```python
import torch

def _softmax(x, axis=-1):
    return torch.softmax(x, dim=axis)
def _gelu(x):
    return torch.nn.functional.gelu(x, approximate="tanh")
def _silu(x):
    return torch.nn.functional.silu(x)
def _sigmoid(x):
    return torch.sigmoid(x)
def _layernorm(x, axis=-1, eps=1e-5):
    m = x.mean(dim=axis, keepdim=True)
    v = x.var(dim=axis, keepdim=True, unbiased=False)
    return (x - m) / torch.sqrt(v + eps)
def _scatter_add(tgt, idx, src, axis=0):
    return tgt.clone().index_add_(axis, idx, src)
def _segment_sum(src, seg, n):
    out = torch.zeros((n,) + src.shape[1:], dtype=src.dtype)
    return out.index_add_(0, seg, src)
def _pad(x, pw):
    flat = tuple(v for pair in reversed(pw) for v in pair)
    return torch.nn.functional.pad(x, flat)

kernel_name = 'concat_heads__softmax_full_mha__sliding_local_dilated__prompt'

def setup_inputs():

    _w = (lambda a: (lambda t: t.to(torch.bfloat16) if t.is_floating_point() else t)(torch.as_tensor(a)))
    def _A_setup():
        B, S, D = 1, 2048, 448
        return {
            "x": _w((lambda *s: torch.randn(*s, dtype=torch.bfloat16) * 0.2)(B, S, D)),
            "wqkv": _w((lambda *s: torch.randn(*s, dtype=torch.bfloat16) * 0.8)(D, 3 * D)),
            "wo": _w((lambda *s: torch.randn(*s, dtype=torch.bfloat16) * 0.2)(D, D)),
        }
    _A_in = _A_setup()

    def _B_setup():
        B, S, D = 1, 2048, 448
        return {
            "x": _w((lambda *s: torch.randn(*s, dtype=torch.bfloat16) * 0.4)(B, S, D)),
            "wqkv": _w((lambda *s: torch.randn(*s, dtype=torch.bfloat16) * 0.8)(D, 3 * D)),
            "wo": _w((lambda *s: torch.randn(*s, dtype=torch.bfloat16) * 0.1)(D, D)),
        }
    _B_in = _B_setup()

    return {
        "A_x": _A_in["x"],
        "A_wqkv": _A_in["wqkv"],
        "A_wo": _A_in["wo"],
        "B_x": _B_in["x"],
        "B_wqkv": _B_in["wqkv"],
        "B_wo": _B_in["wo"],
    }

def reference(A_x, A_wqkv, A_wo, B_x, B_wqkv, B_wo):
    def _A_ref(x, wqkv, wo):
        B, S, D = x.shape
        H = 16; Dh = D // H
        qkv = (lambda x, *d: x.permute(*d))((x @ wqkv).reshape(B, S, 3, H, Dh), 2, 0, 3, 1, 4)
        q, k, v = qkv[0], qkv[1], qkv[2]
        scale = Dh ** -0.5
        scores = torch.einsum("bhqd,bhkd->bhqk", q, k) * scale
        p = _softmax(scores, axis=-1)
        o = torch.einsum("bhqk,bhkd->bhqd", p, v)
        return (lambda x, *d: x.permute(*d))(o, 0, 2, 1, 3).reshape(B, S, D) @ wo

    def _B_ref(x, wqkv, wo):
        B, S, D = x.shape
        H = 16; Dh = D // H
        W, dil = 8, 2
        qkv = (lambda x, *d: x.permute(*d))((x @ wqkv).reshape(B, S, 3, H, Dh), 2, 0, 3, 1, 4)
        q, k, v = qkv[0], qkv[1], qkv[2]
        scale = Dh ** -0.5
        pos = torch.arange(S)
        off = torch.arange(W) * dil
        idx = pos[:, None] - off[None, :]
        mask = idx >= 0
        idx_c = torch.where(mask, idx, 0).reshape(-1)
        kg = k[:, :, idx_c, :].reshape(B, H, S, W, Dh)
        vg = v[:, :, idx_c, :].reshape(B, H, S, W, Dh)
        logits = torch.einsum("bhsd,bhswd->bhsw", q, kg) * scale
        logits = torch.where(mask[None, None, :, :], logits, -1e9)
        attn = _softmax(logits, axis=-1)
        o = torch.einsum("bhsw,bhswd->bhsd", attn, vg)
        return (lambda x, *d: x.permute(*d))(o, 0, 2, 1, 3).reshape(B, S, D) @ wo

    a = _A_ref(A_x, A_wqkv, A_wo)
    b = _B_ref(B_x, B_wqkv, B_wo)
    return torch.concatenate([a, b], axis=-1)
```

```python
import re

TRANS = ("v_exp_f32", "v_log_f32", "v_rcp_f32", "v_rsq_f32", "v_sqrt_f32", "v_sin_f32", "v_cos_f32",
         "v_rcp_iflag_f32", "v_exp_f16", "v_log_f16", "v_rcp_f16")

_reg_re = re.compile(r"^(-|abs\()?([vas])(?:(\d+)|\[(\d+):(\d+)\])\)?$")


def parse_reg(tok):
    tok = tok.strip()
    if tok in ("vcc",):
        return {("s", 106), ("s", 107)}
    if tok == "vcc_lo":
        return {("s", 106)}
    if tok == "vcc_hi":
        return {("s", 107)}
    if tok == "exec":
        return {("s", 126), ("s", 127)}
    if tok == "exec_lo":
        return {("s", 126)}
    if tok == "exec_hi":
        return {("s", 127)}
    if tok == "m0":
        return {("s", 124)}
    m = _reg_re.match(tok)
    if not m:
        return set()
    k = m.group(2)
    if m.group(3) is not None:
        return {(k, int(m.group(3)))}
    return {(k, i) for i in range(int(m.group(4)), int(m.group(5)) + 1)}


class Ins:
    __slots__ = ("text", "op", "kind", "dst", "src", "srcA", "srcB", "srcC", "passes", "ws", "wide_store",
                 "data", "lds_dma", "comment")

    def __init__(self, text):
        self.text = text
        body = text.split(";")[0].strip()
        self.kind = "other"
        self.dst = set(); self.src = set(); self.srcA = set(); self.srcB = set(); self.srcC = set()
        self.data = set()
        self.passes = 0; self.ws = 1; self.wide_store = False; self.lds_dma = False
        if not body or body.endswith(":") or body.startswith("."):
            self.kind = "label" if body.endswith(":") else "directive"
            self.op = ""
            self.ws = 0
            return
        parts = body.split(None, 1)
        op = parts[0]
        self.op = op
        rest = parts[1] if len(parts) > 1 else ""
        ops = []
        depth = 0; cur = ""
        for ch in rest:
            if ch in "[(":
                depth += 1
            if ch in "])":
                depth -= 1
            if ch == "," and depth == 0:
                ops.append(cur.strip()); cur = ""
            else:
                cur += ch
        if cur.strip():
            ops.append(cur.strip())
        mods = []
        if ops:
            toks = ops[-1].split()
            ops[-1] = toks[0]
            mods = toks[1:]
        R = [parse_reg(o) for o in ops]
        if op == "s_nop":
            self.kind = "nop"; self.ws = int(ops[0], 0) + 1
        elif op.startswith("v_mfma"):
            self.kind = "mfma"
            self.dst = R[0]; self.srcA = R[1]; self.srcB = R[2]; self.srcC = R[3]
            self.src = R[1] | R[2] | R[3]
            self.passes = 8 if "32x32" in op else 4
        elif op.startswith("v_permlane"):
            self.kind = "valu"; self.dst = R[0] | R[1]; self.src = R[0] | R[1]
        elif op.startswith("v_cmp"):
            self.kind = "valu"; self.dst = R[0]
            for r in R[1:]:
                self.src |= r
        elif op in ("v_add_co_u32", "v_sub_co_u32", "v_addc_co_u32", "v_subb_co_u32", "v_mad_u64_u32"):
            self.kind = "valu"; self.dst = R[0] | R[1]
            for r in R[2:]:
                self.src |= r
        elif op.startswith("v_"):
            self.kind = "valu"; self.dst = R[0]
            for r in R[1:]:
                self.src |= r
            if op.startswith("v_fmac") or op.startswith("v_writelane") or op.startswith("v_pk_fmac"):
                self.src |= R[0]
            if op.startswith("v_cndmask") and len(ops) == 3:
                self.src |= parse_reg("vcc")
        elif op.startswith("buffer_load") or op.startswith("global_load"):
            self.kind = "vmem"
            if "lds" in mods or "_lds_" in op:
                self.lds_dma = True
                for r in R:
                    self.src |= r
                self.src |= parse_reg("m0")
            else:
                self.dst = R[0]
                for r in R[1:]:
                    self.src |= r
        elif op.startswith("buffer_store"):
            self.kind = "vmem"; self.data = R[0]
            for r in R:
                self.src |= r
            self.wide_store = op.endswith("x4") or op.endswith("x3")
        elif op.startswith("global_store"):
            self.kind = "vmem"; self.data = R[1]
            for r in R:
                self.src |= r
            self.wide_store = op.endswith("x4") or op.endswith("x3")
        elif op.startswith("global_atomic") or op.startswith("buffer_atomic"):
            self.kind = "vmem"
            if "sc0" in mods and op.startswith("global_atomic"):
                self.dst = R[0]
                for r in R[1:]:
                    self.src |= r
            else:
                for r in R:
                    self.src |= r
                if "sc0" in mods:
                    self.dst = R[0]
        elif op.startswith("buffer_") or op.startswith("global_"):
            self.kind = "vmem"
        elif op.startswith("ds_read") or op.startswith("ds_bpermute") or op.startswith("ds_permute") or op.startswith("ds_swizzle"):
            self.kind = "ds"; self.dst = R[0]
            for r in R[1:]:
                self.src |= r
        elif op.startswith("ds_"):
            self.kind = "ds"
            for r in R:
                self.src |= r
        elif op.startswith("s_"):
            self.kind = "salu"
            if op.startswith("s_cmp") or op.startswith("s_cbranch") or op.startswith("s_branch") or op in (
                    "s_waitcnt", "s_barrier", "s_endpgm", "s_setprio", "s_sleep"):
                for r in R:
                    self.src |= r
            else:
                self.dst = R[0] if R else set()
                for r in R[1:]:
                    self.src |= r
                if "saveexec" in op:
                    self.dst = self.dst | parse_reg("exec")
        else:
            raise ValueError("unknown instruction: " + text)


def required(p, c):
    need = 0
    vdst = {r for r in p.dst if r[0] in "va"}
    sdst = {r for r in p.dst if r[0] == "s"}
    if p.kind == "valu":
        if c.kind == "mfma" and vdst & c.src:
            need = max(need, 2)
        if p.op in TRANS and c.kind == "valu" and c.op not in TRANS and vdst & c.src:
            need = max(need, 1)
        if p.op in TRANS and c.kind == "valu" and c.op in TRANS and vdst & c.src:
            need = max(need, 1)
        if c.op.startswith("v_readlane") or c.op.startswith("v_readfirstlane"):
            if vdst & c.src:
                need = max(need, 1)
            if sdst & c.src:
                need = max(need, 4)
        if c.op.startswith("v_permlane") and vdst & c.src:
            need = max(need, 2)
        if ("dpp" in c.text or "row_" in c.text or "quad_perm" in c.text) and c.kind == "valu" and vdst & c.src:
            need = max(need, 2)
        if sdst:
            if c.kind in ("valu", "mfma") and sdst & c.src:
                need = max(need, 2)
            if c.kind == "vmem" and sdst & c.src:
                need = max(need, 5)
            if c.kind == "salu" and sdst & c.src:
                need = max(need, 1)
            if sdst & parse_reg("exec"):
                if c.kind == "mfma":
                    need = max(need, 4)
                if c.kind == "valu":
                    need = max(need, 5)
    if p.kind == "mfma":
        big = p.passes == 8
        if c.kind == "mfma":
            if p.dst & c.srcC:
                if p.dst == c.srcC and p.passes == c.passes:
                    pass
                else:
                    need = max(need, 10 if big else 6)
            if p.dst & (c.srcA | c.srcB):
                need = max(need, 12 if big else 8)
            if p.dst & c.dst and not (p.dst & c.srcC):
                if p.passes != c.passes:
                    need = max(need, 12 if big else 8)
        elif c.kind in ("valu", "vmem", "ds"):
            if p.dst & (c.src | c.dst):
                need = max(need, 12 if big else 8)
            if c.kind == "valu" and p.srcC & c.dst:
                need = max(need, 7 if big else 3)
    if p.kind == "vmem" and p.wide_store:
        if c.kind == "valu" and p.data & c.dst:
            need = max(need, 2)
        elif p.data & c.dst:
            need = max(need, 1)
    if p.kind == "salu" and p.dst & parse_reg("m0"):
        if c.lds_dma:
            need = max(need, 1)
    return need


class Asm:
    def __init__(self):
        self.items = []
        self.nops_inserted = 0
        self.log = []

    def __call__(self, text):
        for line in text.split("\n"):
            line = line.strip()
            if not line or line.startswith(";"):
                if line:
                    self.items.append(Ins(line))
                continue
            self._add(Ins(line))

    def _dist_check(self, seq, c):
        extra = 0
        dist = 0
        for p in reversed(seq):
            if dist >= 20:
                break
            if p.kind in ("label", "directive") or p.op == "":
                continue
            need = required(p, c)
            if need > dist:
                extra = max(extra, need - dist)
            dist += p.ws
        return extra

    def _add(self, c):
        if c.kind not in ("label", "directive"):
            extra = self._dist_check(self.items[-60:], c)
            if extra > 0:
                self.log.append(f"nop {extra} before: {c.text}")
                self.nops_inserted += 1
                while extra > 0:
                    n = min(extra, 16)
                    self.items.append(Ins(f"s_nop {n - 1}"))
                    extra -= n
        self.items.append(c)

    def mark(self):
        return len(self.items)

    def check_backedge(self, start, name=""):
        body = [i for i in self.items[start:] if i.kind not in ("label", "directive") and i.op != ""]
        tail = body[-40:]
        seq = list(tail)
        for c in body[:40]:
            extra = self._dist_check(seq, c)
            if extra > 0:
                raise RuntimeError(f"back-edge hazard in loop {name}: needs {extra} more states before {c.text}")
            seq.append(c)

    def text(self):
        out = []
        for i in self.items:
            if i.kind == "label" or i.text.startswith("."):
                out.append(i.text)
            else:
                out.append("    " + i.text)
        return "\n".join(out) + "\n"
```

```python
import sys, math, struct
sys.path.insert(0, "gen")
from asmlib import Asm

NAME = "concat_heads__softmax_full_mha__sliding_local_dilated__prompt"
WS_QF = 0
WS_KV = 4 << 20
WS_OF = 12 << 20
WS_BYTES = 16 << 20
CSCALE = (28 ** -0.5) * math.log2(math.e)
M_OFFSET = 32.0


def f32(x):
    return "0x%08x" % struct.unpack("<I", struct.pack("<f", x))[0]


def vr(b, n, k="v"):
    return f"{k}[{b}:{b + n - 1}]"


def srd(a, d, lo, hi, nbytes):
    a(f"s_mov_b32 s{d}, s{lo}")
    a(f"s_and_b32 s{d + 1}, s{hi}, 0xffff")
    a(f"s_mov_b32 s{d + 2}, {nbytes}")
    a(f"s_mov_b32 s{d + 3}, 0x20000")


def exec_set(a, lo, hi):
    a(f"s_mov_b32 exec_lo, {lo}")
    a(f"s_mov_b32 exec_hi, {hi}")


def exec_full(a):
    a("s_mov_b64 exec, -1")


def split_negm(a, x, t1, t2, q6, q7, sperm):
    a(f"v_and_b32 v{t1}, 0xffff0000, v{x}")
    a(f"v_sub_f32 v{x}, v{x}, v{t1}")
    a(f"v_and_b32 v{t2}, 0xffff0000, v{x}")
    a(f"v_sub_f32 v{x}, v{x}, v{t2}")
    exec_set(a, 0, -1)
    a(f"v_perm_b32 v{q6}, v{t2}, v{t1}, s{sperm}")
    a(f"v_lshrrev_b32 v{q7}, 16, v{x}")
    exec_full(a)


def max16(a, dst, S, n=16, init=None):
    regs = [S + i for i in range(n)]
    if init is None:
        a(f"v_max3_f32 v{dst}, v{regs[0]}, v{regs[1]}, v{regs[2]}")
        regs = regs[3:]
    else:
        pass
    while len(regs) >= 2:
        a(f"v_max3_f32 v{dst}, v{dst}, v{regs[0]}, v{regs[1]}")
        regs = regs[2:]
    if regs:
        a(f"v_max_f32 v{dst}, v{dst}, v{regs[0]}")


def xhalf_max(a, m, t):
    a(f"v_mov_b32 v{t}, v{m}")
    a(f"v_permlane32_swap_b32 v{m}, v{t}")
    a(f"v_max_f32 v{m}, v{m}, v{t}")


def k1(a):
    a("k1_kernel:")
    a("s_cmp_ge_u32 s2, 256")
    a("s_cbranch_scc1 K1_END")
    a("s_load_dwordx2 s[4:5], s[0:1], 0")
    a("s_load_dwordx2 s[6:7], s[0:1], 8")
    a("s_load_dwordx2 s[28:29], s[0:1], 24")
    a("s_load_dwordx2 s[30:31], s[0:1], 32")
    a("s_load_dwordx2 s[32:33], s[0:1], 64")
    a("v_lshrrev_b32 v12, 6, v0")
    a("v_and_b32 v1, 63, v0")
    a("v_readfirstlane_b32 s23, v12")
    a("s_and_b32 s3, s2, 7")
    a("s_lshr_b32 s24, s2, 3")
    a("s_lshr_b32 s20, s3, 2")
    a("s_and_b32 s25, s3, 1")
    a("s_lshl_b32 s25, s25, 3")
    a("s_and_b32 s21, s24, 7")
    a("s_add_u32 s21, s21, s25")
    a("s_lshr_b32 s25, s3, 1")
    a("s_and_b32 s25, s25, 1")
    a("s_lshl_b32 s25, s25, 2")
    a("s_lshr_b32 s22, s24, 3")
    a("s_add_u32 s22, s22, s25")
    a("s_lshl_b32 s26, s21, 2")
    a("s_add_u32 s26, s26, s23")
    a("s_mul_i32 s27, s26, 28672")
    a("v_and_b32 v12, 31, v1")
    a("v_mul_u32_u24 v2, 896, v12")
    a("v_lshrrev_b32 v13, 5, v1")
    a("v_lshl_add_u32 v2, v13, 4, v2")
    a("v_add_u32 v2, s27, v2")
    a("s_waitcnt lgkmcnt(0)")
    a("s_cmp_eq_u32 s20, 0")
    a("s_cselect_b32 s4, s4, s28")
    a("s_cselect_b32 s5, s5, s29")
    a("s_cselect_b32 s6, s6, s30")
    a("s_cselect_b32 s7, s7, s31")
    srd(a, 8, 4, 5, 2048 * 896)
    srd(a, 12, 6, 7, 448 * 2688)
    srd(a, 16, 32, 33, WS_BYTES)

    def xloads(p):
        for s in range(4 * p, 4 * p + 4):
            a(f"buffer_load_dwordx4 {vr(4 * s, 4, 'a')}, v2, s[8:11], 0 offen offset:{32 * s}")

    xloads(0)
    xloads(1)
    a("s_mul_i32 s27, s22, 112")
    a("s_movk_i32 s34, 2688")
    a("s_movk_i32 s35, 896")
    for m in range(6):
        d = 3 + m
        a(f"v_add_u32 v12, {64 * m}, v1")
        a("v_mul_u32_u24 v13, 3121, v12")
        a("v_lshrrev_b32 v13, 16, v13")
        a("v_mul_u32_u24 v14, 21, v13")
        a("v_sub_u32 v12, v12, v14")
        a("v_and_b32 v14, 3, v13")
        a("v_lshlrev_b32 v14, 2, v14")
        a("v_bfe_u32 v13, v13, 2, 2")
        a("v_add_u32 v13, v13, v14")
        a("v_mul_u32_u24 v14, 37, v12")
        a("v_lshrrev_b32 v14, 8, v14")
        a(f"v_mul_lo_u32 v{d}, v13, s34")
        a(f"v_mad_u32_u24 v{d}, v14, s35, v{d}")
        a("v_mul_u32_u24 v14, 7, v14")
        a("v_sub_u32 v12, v12, v14")
        a(f"v_lshl_add_u32 v{d}, v12, 4, v{d}")
        a(f"v_add_u32 v{d}, s27, v{d}")
    a("s_mul_i32 s24, s23, 43008")
    a("s_mul_i32 s25, s23, 5376")

    def wdma(p):
        for m in range(6):
            a(f"s_add_u32 m0, s25, {p * 4 * 5376 + 1024 * m}")
            if m == 5:
                exec_set(a, 0xffff, 0)
            a(f"buffer_load_dwordx4 v{3 + m}, s[12:15], s24 offen lds")
            if m == 5:
                exec_full(a)
        if p < 6:
            a(f"s_add_u32 s24, s24, {4 * 43008}")

    wdma(0)
    wdma(1)
    for p in range(2, 7):
        xloads(p)
        wdma(p)
    a("v_bfe_u32 v12, v1, 2, 2")
    a("v_lshrrev_b32 v13, 5, v1")
    a("v_lshlrev_b32 v12, 2, v12")
    a("v_lshl_add_u32 v12, v13, 1, v12")
    a("v_mul_u32_u24 v9, 336, v12")
    a("v_bfe_u32 v13, v1, 4, 1")
    a("v_lshl_add_u32 v9, v13, 5, v9")
    a("v_and_b32 v13, 3, v1")
    a("v_lshl_add_u32 v9, v13, 3, v9")
    a("v_add_u32 v10, 64512, v9")
    a("v_add_u32 v11, 129024, v9")
    ACC = 16
    WF = 112

    def trread(s, t):
        hh, sec = divmod(t, 3)
        base = 9 + s // 12
        off = (s % 12) * 5376 + sec * 112 + hh * 56
        d = WF + 24 * (s % 2) + 4 * t
        a(f"ds_read_b64_tr_b16 {vr(d, 2)}, v{base} offset:{off}")
        a(f"ds_read_b64_tr_b16 {vr(d + 2, 2)}, v{base} offset:{off + 336}")

    a("s_waitcnt vmcnt(56)")
    a("s_barrier")
    for t in range(6):
        trread(0, t)
    for s in range(28):
        for t in range(6):
            sec = t % 3
            if s < 27:
                a("s_waitcnt lgkmcnt(10)")
            else:
                a(f"s_waitcnt lgkmcnt({2 * (5 - t)})")
            w = vr(WF + 24 * (s % 2) + 4 * t, 4)
            x = vr(4 * s, 4, "a")
            acc = vr(ACC + 16 * t, 16)
            c = "0" if s == 0 else acc
            if sec < 2:
                a(f"v_mfma_f32_32x32x16_bf16 {acc}, {w}, {x}, {c}")
            else:
                a(f"v_mfma_f32_32x32x16_bf16 {acc}, {x}, {w}, {c}")
            if s < 27:
                trread(s + 1, t)
        if (s + 2) % 4 == 0 and s + 2 < 28:
            p = (s + 2) // 4
            a(f"s_waitcnt vmcnt({70 - 10 * (p + 1)})")
            a("s_barrier")
    a(f"s_mov_b32 s36, {f32(CSCALE)}")
    a(f"s_mov_b32 s37, {f32(CSCALE)}")
    a("s_mov_b32 s38, 0x07060302")
    a("v_lshlrev_b32 v2, 4, v1")
    a("v_and_b32 v12, 31, v1")
    a("v_mov_b32 v15, 0")
    a("v_mov_b32 v13, 0x3f803f80")
    a("v_cmp_eq_u32 vcc, 28, v12")
    a("v_cndmask_b32 v15, v15, v13, vcc")
    a("s_lshl_b32 s27, s20, 4")
    a("s_lshl_b32 s28, s22, 1")
    a("s_add_u32 s27, s27, s28")
    a("s_lshl_b32 s27, s27, 6")
    a("s_add_u32 s27, s27, s26")
    QP, KP, VP, SD = 112, 120, 128, 160
    for hh in range(2):
        AQ, AK, AV = ACC + 48 * hh, ACC + 48 * hh + 16, ACC + 48 * hh + 32
        qp, kp, vp = QP + 24 * hh, KP + 24 * hh, VP + 24 * hh
        a(f"s_lshl_b32 s28, s27, 11")
        a(f"s_lshl_b32 s29, s27, 12")
        a(f"s_add_u32 s29, s29, {WS_KV}")
        for i in range(8):
            a(f"v_cvt_pk_bf16_f32 v{kp + i}, v{AK + 2 * i}, v{AK + 2 * i + 1}")
        for i in range(8):
            a(f"v_pk_mul_f32 {vr(AQ + 2 * i, 2)}, {vr(AQ + 2 * i, 2)}, s[36:37]")
        for i in range(8):
            a(f"v_cvt_pk_bf16_f32 v{qp + i}, v{AQ + 2 * i}, v{AQ + 2 * i + 1}")
        exec_set(a, 0, -1)
        a(f"v_mov_b32 v{kp + 6}, 0x3f803f80")
        a(f"v_mov_b32 v{kp + 7}, 0x3f80")
        a(f"v_mov_b32 v{qp + 6}, 0")
        a(f"v_mov_b32 v{qp + 7}, 0")
        exec_full(a)
        a(f"v_mfma_f32_32x32x16_bf16 {vr(SD, 16)}, {vr(kp, 4)}, {vr(qp, 4)}, 0")
        a(f"v_mfma_f32_32x32x16_bf16 {vr(SD, 16)}, {vr(kp + 4, 4)}, {vr(qp + 4, 4)}, {vr(SD, 16)}")
        a(f"buffer_store_dwordx4 {vr(kp, 4)}, v2, s[16:19], s29 offen")
        a(f"buffer_store_dwordx4 {vr(kp + 4, 4)}, v2, s[16:19], s29 offen offset:1024")
        for i in range(8):
            a(f"v_cvt_pk_bf16_f32 v{vp + i}, v{AV + 2 * i}, v{AV + 2 * i + 1}")
        exec_set(a, "0xf0000000", "0xf0000000")
        for i in range(8):
            a(f"v_mov_b32 v{vp + i}, v15")
        exec_full(a)
        a(f"buffer_store_dwordx4 {vr(vp, 4)}, v2, s[16:19], s29 offen offset:2048")
        a(f"buffer_store_dwordx4 {vr(vp + 4, 4)}, v2, s[16:19], s29 offen offset:3072")
        a(f"buffer_store_dwordx4 {vr(qp, 4)}, v2, s[16:19], s28 offen")
        max16(a, 12, SD)
        xhalf_max(a, 12, 13)
        a(f"v_sub_f32 v12, {f32(-M_OFFSET)}, v12")
        split_negm(a, 12, 13, 14, qp + 6, qp + 7, 38)
        a(f"buffer_store_dwordx4 {vr(qp + 4, 4)}, v2, s[16:19], s28 offen offset:1024")
        if hh == 0:
            a("s_add_u32 s27, s27, 64")
    a("K1_END:")
    a("s_endpgm")


def band_masks():
    own, prev = [], []
    for r in range(16):
        mo = mp = 0
        for lane in range(64):
            q, h = lane % 32, lane // 32
            key = 8 * (r // 4) + 4 * h + r % 4
            d = q - key
            if 0 <= d <= 14 and d % 2 == 0:
                mo |= 1 << lane
            d = q + 32 - key
            if 0 <= d <= 14 and d % 2 == 0:
                mp |= 1 << lane
        own.append(mo); prev.append(mp)
    return own, prev


def finalize(a, O, T, soff, vlane16, t1, t2):
    a(f"v_mov_b32 v{t1}, v{O + 12}")
    a(f"v_mov_b32 v{t2}, v{O + 12}")
    a(f"v_permlane32_swap_b32 v{t1}, v{t2}")
    a(f"v_rcp_f32 v{t2}, v{t2}")
    a(f"s_nop 0")
    for i in range(8):
        a(f"v_pk_mul_f32 {vr(O + 2 * i, 2)}, {vr(O + 2 * i, 2)}, {vr(t2, 2)} op_sel_hi:[1,0]")
    for i in range(8):
        a(f"v_cvt_pk_bf16_f32 v{T + i}, v{O + 2 * i}, v{O + 2 * i + 1}")
    exec_set(a, 0, -1)
    a(f"v_mov_b32 v{T + 6}, 0")
    a(f"v_mov_b32 v{T + 7}, 0")
    exec_full(a)
    a(f"buffer_store_dwordx4 {vr(T, 4)}, v{vlane16}, s[8:11], s{soff} offen")
    a(f"buffer_store_dwordx4 {vr(T + 4, 4)}, v{vlane16}, s[8:11], s{soff} offen offset:1024")


def k2(a):
    Q, S0, P0, O = 16, 48, 80, 96
    QB, KB, VB, KBP, VBP, OB = 160, 168, 176, 184, 192, 196
    a("k2_kernel:")
    a("s_cmp_ge_u32 s2, 256")
    a("s_cbranch_scc1 K2_END")
    a("s_load_dwordx2 s[4:5], s[0:1], 64")
    a("v_lshrrev_b32 v6, 6, v0")
    a("v_and_b32 v1, 63, v0")
    a("v_readfirstlane_b32 s23, v6")
    a("s_and_b32 s3, s2, 7")
    a("s_lshr_b32 s24, s2, 3")
    a("s_lshl_b32 s20, s3, 1")
    a("s_lshr_b32 s25, s24, 4")
    a("s_add_u32 s20, s20, s25")
    a("s_and_b32 s21, s24, 15")
    a("v_lshlrev_b32 v1, 4, v1")
    a("s_lshl_b32 s22, s21, 2")
    a("s_add_u32 s22, s22, s23")
    a("s_add_u32 s26, s20, 16")
    a("s_lshl_b32 s26, s26, 6")
    a("s_add_u32 s27, s26, s22")
    a("s_lshl_b32 s28, s27, 11")
    a("s_lshl_b32 s29, s27, 12")
    a(f"s_add_u32 s29, s29, {WS_KV}")
    a("s_sub_u32 s30, s22, 1")
    a("s_max_i32 s30, s30, 0")
    a("s_add_u32 s30, s30, s26")
    a("s_lshl_b32 s30, s30, 12")
    a(f"s_add_u32 s30, s30, {WS_KV}")
    a("s_lshl_b32 s31, s20, 6")
    a("s_lshl_b32 s32, s23, 4")
    a("s_add_u32 s32, s32, s31")
    a("s_lshl_b32 s32, s32, 12")
    a(f"s_add_u32 s32, s32, {WS_KV}")
    a("s_waitcnt lgkmcnt(0)")
    srd(a, 8, 4, 5, WS_BYTES)
    a("s_add_u32 s12, s4, s32")
    a("s_addc_u32 s13, s5, 0")
    a("s_and_b32 s13, s13, 0xffff")
    a("s_mov_b32 s14, 65536")
    a("s_mov_b32 s15, 0x20000")
    a(f"buffer_load_dwordx4 {vr(QB, 4)}, v1, s[8:11], s28 offen")
    a(f"buffer_load_dwordx4 {vr(QB + 4, 4)}, v1, s[8:11], s28 offen offset:1024")
    a(f"buffer_load_dwordx4 {vr(KB, 4)}, v1, s[8:11], s29 offen")
    a(f"buffer_load_dwordx4 {vr(KB + 4, 4)}, v1, s[8:11], s29 offen offset:1024")
    a(f"buffer_load_dwordx4 {vr(KBP, 4)}, v1, s[8:11], s30 offen")
    a(f"buffer_load_dwordx4 {vr(KBP + 4, 4)}, v1, s[8:11], s30 offen offset:1024")
    a(f"buffer_load_dwordx4 {vr(VB, 4)}, v1, s[8:11], s29 offen offset:2048")
    a(f"buffer_load_dwordx4 {vr(VB + 4, 4)}, v1, s[8:11], s29 offen offset:3072")
    a(f"buffer_load_dwordx4 {vr(VBP, 4)}, v1, s[8:11], s30 offen offset:3072")
    for j in range(4):
        a(f"s_add_u32 s33, s23, {j}")
        a("s_and_b32 s33, s33, 3")
        a(f"s_lshl_b32 s{40 + j}, s33, 0")
        a("s_lshl_b32 s34, s21, 2")
        a("s_add_u32 s33, s33, s34")
        a("s_add_u32 s33, s33, s31")
        a("s_lshl_b32 s33, s33, 11")
        a(f"buffer_load_dwordx4 {vr(Q + 8 * j, 4)}, v1, s[8:11], s33 offen")
        a(f"buffer_load_dwordx4 {vr(Q + 8 * j + 4, 4)}, v1, s[8:11], s33 offen offset:1024")
    a("v_mov_b32 v2, v1")
    a("v_add_u32 v3, 4096, v1")
    a("v_add_u32 v4, 8192, v1")
    a("v_add_u32 v5, 12288, v1")
    for i in range(8):
        a(f"v_accvgpr_write_b32 a{56 + i}, 0")

    def ldK(i):
        a(f"buffer_load_dwordx4 {vr(16 * i, 4, 'a')}, v{2 + i}, s[12:15], 0 offen")
        a(f"buffer_load_dwordx4 {vr(16 * i + 4, 4, 'a')}, v{2 + i}, s[12:15], 0 offen offset:1024")

    def ldV(i):
        a(f"buffer_load_dwordx4 {vr(16 * i + 8, 4, 'a')}, v{2 + i}, s[12:15], 0 offen offset:2048")
        a(f"buffer_load_dwordx4 {vr(16 * i + 12, 4, 'a')}, v{2 + i}, s[12:15], 0 offen offset:3072")

    for i in range(3):
        ldK(i); ldV(i)
    ldK(3)
    for i in range(64):
        a(f"v_mov_b32 v{O + i}, 0")
    own, prev = band_masks()
    a("s_cmp_eq_u32 s22, 0")
    a("s_cselect_b64 s[36:37], 0, -1")
    a(f"v_mov_b32 v7, {f32(-1e30)}")
    SO, SP = S0, S0 + 16
    a("s_waitcnt vmcnt(27)")
    a(f"v_mfma_f32_32x32x16_bf16 {vr(SO, 16)}, {vr(KB, 4)}, {vr(QB, 4)}, 0")
    a(f"v_mfma_f32_32x32x16_bf16 {vr(SO, 16)}, {vr(KB + 4, 4)}, {vr(QB + 4, 4)}, {vr(SO, 16)}")
    a("s_waitcnt vmcnt(25)")
    a(f"v_mfma_f32_32x32x16_bf16 {vr(SP, 16)}, {vr(KBP, 4)}, {vr(QB, 4)}, 0")
    a(f"v_mfma_f32_32x32x16_bf16 {vr(SP, 16)}, {vr(KBP + 4, 4)}, {vr(QB + 4, 4)}, {vr(SP, 16)}")
    for r in range(16):
        sp = 44 + 2 * (r % 4)
        a(f"s_mov_b32 s{sp}, 0x{own[r] & 0xffffffff:x}")
        a(f"s_mov_b32 s{sp + 1}, 0x{own[r] >> 32:x}")
        a(f"v_cndmask_b32 v{SO + r}, v7, v{SO + r}, s[{sp}:{sp + 1}]")
    for r in range(8):
        assert prev[r] == 0
    for r in range(8, 16):
        sp = 44 + 2 * (r % 4)
        a(f"s_mov_b32 s{sp}, 0x{prev[r] & 0xffffffff:x}")
        a(f"s_mov_b32 s{sp + 1}, 0x{prev[r] >> 32:x}")
        a(f"s_and_b64 s[{sp}:{sp + 1}], s[{sp}:{sp + 1}], s[36:37]")
        a(f"v_cndmask_b32 v{SP + r}, v7, v{SP + r}, s[{sp}:{sp + 1}]")
    max16(a, 8, SO)
    max16(a, 8, SP + 8, n=8, init=True)
    xhalf_max(a, 8, 9)
    regs = [SO + r for r in range(16)] + [SP + r for r in range(8, 16)]
    for r in regs:
        a(f"v_sub_f32 v{r}, v{r}, v8")
    for r in regs:
        a(f"v_exp_f32 v{r}, v{r}")
    for i in range(8):
        a(f"v_cvt_pk_bf16_f32 v{P0 + i}, v{SO + 2 * i}, v{SO + 2 * i + 1}")
    for i in range(4):
        a(f"v_cvt_pk_bf16_f32 v{P0 + 8 + i}, v{SP + 8 + 2 * i}, v{SP + 8 + 2 * i + 1}")
    a("s_waitcnt vmcnt(22)")
    a(f"v_mfma_f32_32x32x16_bf16 {vr(OB, 16)}, {vr(VB, 4)}, {vr(P0, 4)}, 0")
    a(f"v_mfma_f32_32x32x16_bf16 {vr(OB, 16)}, {vr(VB + 4, 4)}, {vr(P0 + 4, 4)}, {vr(OB, 16)}")
    a(f"v_mfma_f32_32x32x16_bf16 {vr(OB, 16)}, {vr(VBP, 4)}, {vr(P0 + 8, 4)}, {vr(OB, 16)}")
    a("s_lshl_b32 s38, s22, 4")
    a("s_add_u32 s38, s38, s20")
    a("s_lshl_b32 s38, s38, 11")
    a(f"s_add_u32 s38, s38, {WS_OF}")
    a(f"s_add_u32 s39, s38, {2 << 20}")
    a("s_waitcnt vmcnt(12)")
    a(f"v_mfma_f32_32x32x16_bf16 {vr(S0, 16)}, {vr(0, 4, 'a')}, {vr(Q, 4)}, 0")
    a(f"v_mfma_f32_32x32x16_bf16 {vr(S0, 16)}, {vr(4, 4, 'a')}, {vr(Q + 4, 4)}, {vr(S0, 16)}")
    finalize(a, OB, QB, 39, 1, 8, 10)
    for i in range(8):
        a(f"v_mov_b32 v{P0 + 8 + i}, 0")
    a("s_mov_b32 s35, 4")
    a(".p2align 6")
    a("K2_LOOP:")
    lstart = a.mark()
    for i in range(4):
        for j in range(4):
            n = 4 * i + j
            Sc, Sn = S0 + 16 * (n % 2), S0 + 16 * ((n + 1) % 2)
            Pc, Pp = P0 + 8 * (n % 2), P0 + 8 * ((n + 1) % 2)
            i1, j1 = (i, j + 1) if j < 3 else ((i + 1) % 4, 0)
            i0, j0 = (i, j - 1) if j > 0 else ((i - 1) % 4, 3)
            ex = [f"v_exp_f32 v{Sc + r}, v{Sc + r}" for r in range(16)]
            cv = [f"v_cvt_pk_bf16_f32 v{Pc + r}, v{Sc + 2 * r}, v{Sc + 2 * r + 1}" for r in range(8)]
            if j == 3:
                a("s_waitcnt vmcnt(12)")
            a(f"v_mfma_f32_32x32x16_bf16 {vr(Sn, 16)}, {vr(16 * i1, 4, 'a')}, {vr(Q + 8 * j1, 4)}, 0")
            for x in ex[0:4]: a(x)
            a(f"v_mfma_f32_32x32x16_bf16 {vr(Sn, 16)}, {vr(16 * i1 + 4, 4, 'a')}, {vr(Q + 8 * j1 + 4, 4)}, {vr(Sn, 16)}")
            for x in ex[4:8]: a(x)
            for x in cv[0:2]: a(x)
            if j == 1:
                a("s_waitcnt vmcnt(12)")
            Oj = vr(O + 16 * j0, 16)
            a(f"v_mfma_f32_32x32x16_bf16 {Oj}, {vr(16 * i0 + 8, 4, 'a')}, {vr(Pp, 4)}, {Oj}")
            for x in ex[8:12]: a(x)
            for x in cv[2:4]: a(x)
            a(f"v_mfma_f32_32x32x16_bf16 {Oj}, {vr(16 * i0 + 12, 4, 'a')}, {vr(Pp + 4, 4)}, {Oj}")
            for x in ex[12:16]: a(x)
            for x in cv[4:8]: a(x)
            if j == 0:
                ldV((i - 1) % 4)
            if j == 1:
                a(f"v_add_u32 v{2 + i}, 16384, v{2 + i}")
            if j == 2:
                ldK(i)
    a("s_sub_u32 s35, s35, 1")
    a("s_cmp_lg_u32 s35, 0")
    a("s_cbranch_scc1 K2_LOOP")
    a.check_backedge(lstart, "k2")
    Oj = vr(O + 48, 16)
    a(f"v_mfma_f32_32x32x16_bf16 {Oj}, {vr(56, 4, 'a')}, {vr(P0 + 8, 4)}, {Oj}")
    a(f"v_mfma_f32_32x32x16_bf16 {Oj}, {vr(60, 4, 'a')}, {vr(P0 + 12, 4)}, {Oj}")
    for j in range(1, 4):
        a(f"s_mul_i32 s33, s{40 + j}, 12288")
        a(f"s_add_u32 s33, s33, {(j - 1) * 4096}")
        a(f"v_add_u32 v{2 + j}, s33, v1")
    a("s_mul_i32 s33, s23, 12288")
    a("v_add_u32 v2, s33, v1")
    for j in range(1, 4):
        for k in range(4):
            a(f"ds_write_b128 v{2 + j}, {vr(O + 16 * j + 4 * k, 4)} offset:{1024 * k}")
    a("s_waitcnt lgkmcnt(0)")
    a("s_barrier")
    T = S0
    for k in range(12):
        a(f"ds_read_b128 {vr(T + 4 * k, 4)}, v2 offset:{1024 * k}")
    for sl in range(3):
        for k in range(4):
            a(f"s_waitcnt lgkmcnt({11 - (4 * sl + k)})")
            for u in range(2):
                r = 4 * k + 2 * u
                a(f"v_pk_add_f32 {vr(O + r, 2)}, {vr(O + r, 2)}, {vr(T + 16 * sl + r, 2)}")
    a("v_mov_b32 v8, 0")
    a("v_mov_b32 v9, 0")
    a("v_mov_b32 v10, 0")
    a("v_mov_b32 v11, 0")
    for i in range(8):
        a(f"v_pk_fma_f32 v[8:9], {vr(O + 2 * i, 2)}, v[10:11], v[8:9]")
    a(f"v_mov_b32 v10, {f32(2.0 ** 120)}")
    a("v_cmp_u_f32 vcc, v8, v9")
    a(f"v_cmp_nlt_f32 s[44:45], v{O + 12}, v10")
    a("s_and_b32 s44, s45, -1")
    a("s_or_b32 s44, s44, vcc_lo")
    a("s_or_b32 s44, s44, vcc_hi")
    a("s_cmp_lg_u32 s44, 0")
    a("s_cbranch_scc1 K2_SLOW")
    a("K2_FIN:")
    finalize(a, O, S0, 38, 1, 8, 10)
    a("K2_END:")
    a("s_endpgm")
    a("K2_SLOW:")
    a("s_nop 7")
    a("s_lshl_b32 s32, s31, 12")
    a(f"s_add_u32 s32, s32, {WS_KV}")
    a("s_add_u32 s12, s4, s32")
    a("s_addc_u32 s13, s5, 0")
    a("s_and_b32 s13, s13, 0xffff")
    a("s_mov_b32 s14, 262144")
    a("s_mov_b32 s15, 0x20000")
    a("s_mov_b32 s46, 0x07060302")
    exec_set(a, 0, -1)
    a(f"v_mov_b32 v{Q + 6}, 0")
    a(f"v_mov_b32 v{Q + 7}, 0")
    exec_full(a)
    a("v_mov_b32 v8, 0xff800000")
    a("v_mov_b32 v2, v1")
    a("s_mov_b32 s35, 64")
    a("K2_SLOW1:")
    a(f"buffer_load_dwordx4 {vr(0, 4, 'a')}, v2, s[12:15], 0 offen")
    a(f"buffer_load_dwordx4 {vr(4, 4, 'a')}, v2, s[12:15], 0 offen offset:1024")
    a("s_waitcnt vmcnt(0)")
    a(f"v_mfma_f32_32x32x16_bf16 {vr(S0, 16)}, {vr(0, 4, 'a')}, {vr(Q, 4)}, 0")
    a(f"v_mfma_f32_32x32x16_bf16 {vr(S0, 16)}, {vr(4, 4, 'a')}, {vr(Q + 4, 4)}, {vr(S0, 16)}")
    a("v_add_u32 v2, 4096, v2")
    max16(a, 8, S0, init=True)
    a("s_nop 7")
    a("s_sub_u32 s35, s35, 1")
    a("s_cmp_lg_u32 s35, 0")
    a("s_cbranch_scc1 K2_SLOW1")
    xhalf_max(a, 8, 9)
    a("v_sub_f32 v8, 0, v8")
    split_negm(a, 8, 9, 10, Q + 6, Q + 7, 46)
    for i in range(16):
        a(f"v_mov_b32 v{O + i}, 0")
    a("v_mov_b32 v2, v1")
    a("s_mov_b32 s35, 64")
    a("K2_SLOW2:")
    for k in range(4):
        a(f"buffer_load_dwordx4 {vr(4 * k, 4, 'a')}, v2, s[12:15], 0 offen offset:{1024 * k}")
    a("s_waitcnt vmcnt(0)")
    a(f"v_mfma_f32_32x32x16_bf16 {vr(S0, 16)}, {vr(0, 4, 'a')}, {vr(Q, 4)}, 0")
    a(f"v_mfma_f32_32x32x16_bf16 {vr(S0, 16)}, {vr(4, 4, 'a')}, {vr(Q + 4, 4)}, {vr(S0, 16)}")
    a("v_add_u32 v2, 4096, v2")
    for r in range(16):
        a(f"v_exp_f32 v{S0 + r}, v{S0 + r}")
    for r in range(8):
        a(f"v_cvt_pk_bf16_f32 v{P0 + r}, v{S0 + 2 * r}, v{S0 + 2 * r + 1}")
    a(f"v_mfma_f32_32x32x16_bf16 {vr(O, 16)}, {vr(8, 4, 'a')}, {vr(P0, 4)}, {vr(O, 16)}")
    a(f"v_mfma_f32_32x32x16_bf16 {vr(O, 16)}, {vr(12, 4, 'a')}, {vr(P0 + 4, 4)}, {vr(O, 16)}")
    a("s_nop 15")
    a("s_sub_u32 s35, s35, 1")
    a("s_cmp_lg_u32 s35, 0")
    a("s_cbranch_scc1 K2_SLOW2")
    a("s_nop 7")
    a("s_branch K2_FIN")


def k3(a):
    a("k3_kernel:")
    a("s_cmp_ge_u32 s2, 224")
    a("s_cbranch_scc1 K3_END")
    a("s_load_dwordx2 s[4:5], s[0:1], 16")
    a("s_load_dwordx2 s[6:7], s[0:1], 40")
    a("s_load_dwordx2 s[28:29], s[0:1], 48")
    a("s_load_dwordx2 s[30:31], s[0:1], 64")
    a("v_lshrrev_b32 v6, 6, v0")
    a("v_and_b32 v1, 63, v0")
    a("v_readfirstlane_b32 s23, v6")
    a("s_and_b32 s3, s2, 7")
    a("s_lshr_b32 s24, s2, 3")
    a("s_mul_i32 s25, s24, 37")
    a("s_lshr_b32 s25, s25, 8")
    a("s_mul_i32 s26, s25, 7")
    a("s_sub_u32 s22, s24, s26")
    a("s_lshl_b32 s3, s3, 2")
    a("s_add_u32 s25, s25, s3")
    a("s_lshr_b32 s20, s25, 4")
    a("s_lshl_b32 s26, s25, 2")
    a("s_add_u32 s26, s26, s23")
    a("s_lshl_b32 s27, s26, 15")
    a(f"s_add_u32 s27, s27, {WS_OF}")
    a("v_lshlrev_b32 v2, 4, v1")
    a("v_lshrrev_b32 v6, 3, v1")
    a("v_mul_u32_u24 v3, 896, v6")
    a("v_bfe_u32 v7, v1, 4, 1")
    a("v_lshlrev_b32 v7, 2, v7")
    a("v_and_b32 v8, 7, v1")
    a("v_xor_b32 v7, v7, v8")
    a("v_lshl_add_u32 v3, v7, 4, v3")
    a("s_lshl_b32 s32, s22, 7")
    a("v_add_u32 v3, s32, v3")
    a("s_mul_i32 s24, s23, 7168")
    a("s_lshl_b32 s25, s23, 10")
    a("s_waitcnt lgkmcnt(0)")
    a("s_cmp_eq_u32 s20, 0")
    a("s_cselect_b32 s4, s4, s6")
    a("s_cselect_b32 s5, s5, s7")
    srd(a, 12, 4, 5, 448 * 896)
    srd(a, 8, 30, 31, WS_BYTES)
    srd(a, 16, 28, 29, 2048 * 1792)
    nd = [4, 4, 3, 3]
    m = 0
    for p in range(4):
        for _ in range(nd[p]):
            a(f"s_add_u32 m0, s25, {4096 * m}")
            a("s_nop 0")
            a("buffer_load_dwordx4 v3, s[12:15], s24 offen lds")
            a(f"s_add_u32 s24, s24, {4 * 7168}")
            m += 1
        for k in range(8):
            ks = 8 * p + k
            if (ks * 1024) % 4096 == 0 and ks > 0:
                a("s_add_u32 s27, s27, 4096")
            a(f"buffer_load_dwordx4 {vr(4 * ks, 4, 'a')}, v2, s[8:11], s27 offen offset:{(ks * 1024) % 4096}")
    a("v_mov_b32 v8, 0")
    a("v_mov_b32 v9, 0")
    a("v_lshlrev_b32 v6, 3, v1")
    a("ds_write_b64 v6, v[8:9] offset:57344")
    a("v_bfe_u32 v6, v1, 2, 2")
    a("v_lshrrev_b32 v7, 5, v1")
    a("v_lshl_add_u32 v7, v7, 2, v6")
    a("v_lshlrev_b32 v4, 7, v7")
    a("v_bfe_u32 v7, v1, 4, 1")
    a("v_lshl_add_u32 v4, v7, 5, v4")
    a("v_and_b32 v7, 1, v1")
    a("v_lshl_add_u32 v4, v7, 4, v4")
    a("v_bfe_u32 v7, v1, 1, 1")
    a("v_lshl_add_u32 v4, v7, 3, v4")
    a("v_lshrrev_b32 v6, 1, v6")
    a("v_lshlrev_b32 v6, 6, v6")
    a("v_add_u32 v5, v4, v6")
    a("v_xor_b32 v6, 64, v6")
    a("v_add_u32 v4, v4, v6")
    ACC, WF = 16, 48

    def trread(ks, ct):
        hd, f = divmod(ks, 2)
        off = (28 * hd + 16 * f) * 128
        d = WF + 8 * (ks % 2) + 4 * ct
        b = 5 - ct
        a(f"ds_read_b64_tr_b16 {vr(d, 2)}, v{b} offset:{off}")
        a(f"ds_read_b64_tr_b16 {vr(d + 2, 2)}, v{b} offset:{off + 1024}")

    tot = 14 + 32
    cum = [12, 24, 35, 46]
    a(f"s_waitcnt vmcnt({tot - cum[0]}) lgkmcnt(0)")
    a("s_barrier")
    trread(0, 0); trread(0, 1)
    for ks in range(32):
        for ct in range(2):
            if ks < 31:
                a("s_waitcnt lgkmcnt(2)")
            else:
                a(f"s_waitcnt lgkmcnt({2 * (1 - ct)})")
            acc = vr(ACC + 16 * ct, 16)
            c = "0" if ks == 0 else acc
            a(f"v_mfma_f32_32x32x16_bf16 {acc}, {vr(WF + 8 * (ks % 2) + 4 * ct, 4)}, {vr(4 * ks, 4, 'a')}, {c}")
            if ks < 31:
                trread(ks + 1, ct)
        if (ks + 2) % 8 == 0 and ks + 2 < 32:
            p = (ks + 2) // 8
            a(f"s_waitcnt vmcnt({tot - cum[p]})")
            a("s_barrier")
    a("s_and_b32 s26, s26, 63")
    a("s_mul_i32 s27, s26, 57344")
    a("s_mul_i32 s33, s20, 896")
    a("s_add_u32 s27, s27, s33")
    a("s_add_u32 s27, s27, s32")
    a("v_and_b32 v6, 31, v1")
    a("v_mul_u32_u24 v6, 1792, v6")
    a("v_lshrrev_b32 v7, 5, v1")
    a("v_lshl_add_u32 v6, v7, 4, v6")
    for ct in range(2):
        for i in range(8):
            a(f"v_cvt_pk_bf16_f32 v{64 + 8 * ct + i}, v{ACC + 16 * ct + 2 * i}, v{ACC + 16 * ct + 2 * i + 1}")
        a(f"buffer_store_dwordx4 {vr(64 + 8 * ct, 4)}, v6, s[16:19], s27 offen offset:{64 * ct}")
        a(f"buffer_store_dwordx4 {vr(64 + 8 * ct + 4, 4)}, v6, s[16:19], s27 offen offset:{64 * ct + 32}")
    a("K3_END:")
    a("s_endpgm")


def kd(name, nv, acc):
    return f""".p2align 6
.amdhsa_kernel {name}
  .amdhsa_next_free_vgpr {nv}
  .amdhsa_next_free_sgpr 64
  .amdhsa_accum_offset {acc}
  .amdhsa_group_segment_fixed_size 0
  .amdhsa_kernarg_size 72
  .amdhsa_user_sgpr_count 2
  .amdhsa_user_sgpr_kernarg_segment_ptr 1
  .amdhsa_system_sgpr_workgroup_id_x 1
.end_amdhsa_kernel
"""


def main(out):
    hdr = open(f"cdna_kernels/{NAME}.s.ref").read().split("; Override")[0]
    txt = hdr
    txt += "; @launch kernel=k1_kernel grid=(256,1,1) block=(256,1,1) lds=151552\n"
    txt += "; @launch kernel=k2_kernel grid=(256,1,1) block=(256,1,1) lds=49152\n"
    txt += "; @launch kernel=k3_kernel grid=(224,1,1) block=(256,1,1) lds=57856\n"
    txt += '.amdgcn_target "amdgcn-amd-amdhsa--gfx950"\n.text\n'
    for nm, fn in (("k1_kernel", k1), ("k2_kernel", k2), ("k3_kernel", k3)):
        a = Asm()
        fn(a)
        txt += f".globl {nm}\n.p2align 8\n.type {nm},@function\n" + a.text()
        print(nm, "instrs:", len(a.items), "auto nops:", a.nops_inserted, file=sys.stderr)
        for l in a.log:
            print("   ", l, file=sys.stderr)
    txt += '.section .rodata,"a"\n'
    txt += kd("k1_kernel", 304, 192) + kd("k2_kernel", 276, 212) + kd("k3_kernel", 208, 80)
    open(out, "w").write(txt)


if __name__ == "__main__":
    main(sys.argv[1] if len(sys.argv) > 1 else f"cdna_kernels/{NAME}.s")
```

```python
import re

TRANS = ("v_exp_f32", "v_log_f32", "v_rcp_f32", "v_rsq_f32", "v_sqrt_f32", "v_sin_f32", "v_cos_f32",
         "v_rcp_iflag_f32", "v_exp_f16", "v_log_f16", "v_rcp_f16")

_reg_re = re.compile(r"^(-|abs\()?([vas])(?:(\d+)|\[(\d+):(\d+)\])\)?$")


def parse_reg(tok):
    tok = tok.strip()
    if tok in ("vcc",):
        return {("s", 106), ("s", 107)}
    if tok == "vcc_lo":
        return {("s", 106)}
    if tok == "vcc_hi":
        return {("s", 107)}
    if tok == "exec":
        return {("s", 126), ("s", 127)}
    if tok == "exec_lo":
        return {("s", 126)}
    if tok == "exec_hi":
        return {("s", 127)}
    if tok == "m0":
        return {("s", 124)}
    m = _reg_re.match(tok)
    if not m:
        return set()
    k = m.group(2)
    if m.group(3) is not None:
        return {(k, int(m.group(3)))}
    return {(k, i) for i in range(int(m.group(4)), int(m.group(5)) + 1)}


class Ins:
    __slots__ = ("text", "op", "kind", "dst", "src", "srcA", "srcB", "srcC", "passes", "ws", "wide_store",
                 "data", "lds_dma", "comment")

    def __init__(self, text):
        self.text = text
        body = text.split(";")[0].strip()
        self.kind = "other"
        self.dst = set(); self.src = set(); self.srcA = set(); self.srcB = set(); self.srcC = set()
        self.data = set()
        self.passes = 0; self.ws = 1; self.wide_store = False; self.lds_dma = False
        if not body or body.endswith(":") or body.startswith("."):
            self.kind = "label" if body.endswith(":") else "directive"
            self.op = ""
            self.ws = 0
            return
        parts = body.split(None, 1)
        op = parts[0]
        self.op = op
        rest = parts[1] if len(parts) > 1 else ""
        ops = []
        depth = 0; cur = ""
        for ch in rest:
            if ch in "[(":
                depth += 1
            if ch in "])":
                depth -= 1
            if ch == "," and depth == 0:
                ops.append(cur.strip()); cur = ""
            else:
                cur += ch
        if cur.strip():
            ops.append(cur.strip())
        mods = []
        if ops:
            toks = ops[-1].split()
            ops[-1] = toks[0]
            mods = toks[1:]
        R = [parse_reg(o) for o in ops]
        if op == "s_nop":
            self.kind = "nop"; self.ws = int(ops[0], 0) + 1
        elif op.startswith("v_mfma"):
            self.kind = "mfma"
            self.dst = R[0]; self.srcA = R[1]; self.srcB = R[2]; self.srcC = R[3]
            self.src = R[1] | R[2] | R[3]
            self.passes = 8 if "32x32" in op else 4
        elif op.startswith("v_permlane"):
            self.kind = "valu"; self.dst = R[0] | R[1]; self.src = R[0] | R[1]
        elif op.startswith("v_cmp"):
            self.kind = "valu"; self.dst = R[0]
            for r in R[1:]:
                self.src |= r
        elif op in ("v_add_co_u32", "v_sub_co_u32", "v_addc_co_u32", "v_subb_co_u32", "v_mad_u64_u32"):
            self.kind = "valu"; self.dst = R[0] | R[1]
            for r in R[2:]:
                self.src |= r
        elif op.startswith("v_"):
            self.kind = "valu"; self.dst = R[0]
            for r in R[1:]:
                self.src |= r
            if op.startswith("v_fmac") or op.startswith("v_writelane") or op.startswith("v_pk_fmac"):
                self.src |= R[0]
            if op.startswith("v_cndmask") and len(ops) == 3:
                self.src |= parse_reg("vcc")
        elif op.startswith("buffer_load") or op.startswith("global_load"):
            self.kind = "vmem"
            if "lds" in mods or "_lds_" in op:
                self.lds_dma = True
                for r in R:
                    self.src |= r
                self.src |= parse_reg("m0")
            else:
                self.dst = R[0]
                for r in R[1:]:
                    self.src |= r
        elif op.startswith("buffer_store"):
            self.kind = "vmem"; self.data = R[0]
            for r in R:
                self.src |= r
            self.wide_store = op.endswith("x4") or op.endswith("x3")
        elif op.startswith("global_store"):
            self.kind = "vmem"; self.data = R[1]
            for r in R:
                self.src |= r
            self.wide_store = op.endswith("x4") or op.endswith("x3")
        elif op.startswith("global_atomic") or op.startswith("buffer_atomic"):
            self.kind = "vmem"
            if "sc0" in mods and op.startswith("global_atomic"):
                self.dst = R[0]
                for r in R[1:]:
                    self.src |= r
            else:
                for r in R:
                    self.src |= r
                if "sc0" in mods:
                    self.dst = R[0]
        elif op.startswith("buffer_") or op.startswith("global_"):
            self.kind = "vmem"
        elif op.startswith("ds_read") or op.startswith("ds_bpermute") or op.startswith("ds_permute") or op.startswith("ds_swizzle"):
            self.kind = "ds"; self.dst = R[0]
            for r in R[1:]:
                self.src |= r
        elif op.startswith("ds_"):
            self.kind = "ds"
            for r in R:
                self.src |= r
        elif op.startswith("s_"):
            self.kind = "salu"
            if op.startswith("s_cmp") or op.startswith("s_cbranch") or op.startswith("s_branch") or op in (
                    "s_waitcnt", "s_barrier", "s_endpgm", "s_setprio", "s_sleep"):
                for r in R:
                    self.src |= r
            else:
                self.dst = R[0] if R else set()
                for r in R[1:]:
                    self.src |= r
                if "saveexec" in op:
                    self.dst = self.dst | parse_reg("exec")
        else:
            raise ValueError("unknown instruction: " + text)


def required(p, c):
    need = 0
    vdst = {r for r in p.dst if r[0] in "va"}
    sdst = {r for r in p.dst if r[0] == "s"}
    if p.kind == "valu":
        if c.kind == "mfma" and vdst & c.src:
            need = max(need, 2)
        if p.op in TRANS and c.kind == "valu" and c.op not in TRANS and vdst & c.src:
            need = max(need, 1)
        if p.op in TRANS and c.kind == "valu" and c.op in TRANS and vdst & c.src:
            need = max(need, 1)
        if c.op.startswith("v_readlane") or c.op.startswith("v_readfirstlane"):
            if vdst & c.src:
                need = max(need, 1)
            if sdst & c.src:
                need = max(need, 4)
        if c.op.startswith("v_permlane") and vdst & c.src:
            need = max(need, 2)
        if ("dpp" in c.text or "row_" in c.text or "quad_perm" in c.text) and c.kind == "valu" and vdst & c.src:
            need = max(need, 2)
        if sdst:
            if c.kind in ("valu", "mfma") and sdst & c.src:
                need = max(need, 2)
            if c.kind == "vmem" and sdst & c.src:
                need = max(need, 5)
            if c.kind == "salu" and sdst & c.src:
                need = max(need, 1)
            if sdst & parse_reg("exec"):
                if c.kind == "mfma":
                    need = max(need, 4)
                if c.kind == "valu":
                    need = max(need, 5)
    if p.kind == "mfma":
        big = p.passes == 8
        if c.kind == "mfma":
            if p.dst & c.srcC:
                if p.dst == c.srcC and p.passes == c.passes:
                    pass
                else:
                    need = max(need, 10 if big else 6)
            if p.dst & (c.srcA | c.srcB):
                need = max(need, 12 if big else 8)
            if p.dst & c.dst and not (p.dst & c.srcC):
                if p.passes != c.passes:
                    need = max(need, 12 if big else 8)
        elif c.kind in ("valu", "vmem", "ds"):
            if p.dst & (c.src | c.dst):
                need = max(need, 12 if big else 8)
            if c.kind == "valu" and p.srcC & c.dst:
                need = max(need, 7 if big else 3)
    if p.kind == "vmem" and p.wide_store:
        if c.kind == "valu" and p.data & c.dst:
            need = max(need, 2)
        elif p.data & c.dst:
            need = max(need, 1)
    if p.kind == "salu" and p.dst & parse_reg("m0"):
        if c.lds_dma:
            need = max(need, 1)
    return need


class Asm:
    def __init__(self):
        self.items = []
        self.nops_inserted = 0
        self.log = []
        self.vmq = []
        self.dsq = []

    def __call__(self, text):
        for line in text.split("\n"):
            line = line.strip()
            if not line or line.startswith(";"):
                if line:
                    self.items.append(Ins(line))
                continue
            self._add(Ins(line))

    def _dist_check(self, seq, c):
        extra = 0
        dist = 0
        for p in reversed(seq):
            if dist >= 20:
                break
            if p.kind in ("label", "directive") or p.op == "":
                continue
            need = required(p, c)
            if need > dist:
                extra = max(extra, need - dist)
            dist += p.ws
        return extra

    def _add(self, c):
        if c.kind not in ("label", "directive"):
            extra = self._dist_check(self.items[-60:], c)
            if extra > 0:
                self.log.append(f"nop {extra} before: {c.text}")
                self.nops_inserted += 1
                while extra > 0:
                    n = min(extra, 16)
                    self.items.append(Ins(f"s_nop {n - 1}"))
                    extra -= n
        self.items.append(c)

    def vm_reset(self):
        self.vmq = []

    def vm(self, text, tag=None):
        self(text)
        self.vmq.append(tag)

    def vm_wait(self, *tags, extra=""):
        last = -1
        for i, t in enumerate(self.vmq):
            if t in tags:
                last = i
        if last < 0:
            if extra:
                self(f"s_waitcnt{extra}")
            return
        n = len(self.vmq) - 1 - last
        assert n <= 63, n
        self(f"s_waitcnt vmcnt({n}){extra}")
        self.vmq = self.vmq[last + 1:]

    def ds(self, text, tag=None):
        self(text)
        self.dsq.append(tag)

    def ds_wait(self, *tags):
        last = -1
        for i, t in enumerate(self.dsq):
            if t in tags:
                last = i
        if last < 0:
            return
        n = len(self.dsq) - 1 - last
        self(f"s_waitcnt lgkmcnt({min(n, 15)})")
        self.dsq = self.dsq[last + 1:]

    def ds_drain(self):
        self("s_waitcnt lgkmcnt(0)")
        self.dsq = []

    def mark(self):
        return len(self.items)

    def check_backedge(self, start, name=""):
        body = [i for i in self.items[start:] if i.kind not in ("label", "directive") and i.op != ""]
        tail = body[-40:]
        seq = list(tail)
        for c in body[:40]:
            extra = self._dist_check(seq, c)
            if extra > 0:
                raise RuntimeError(f"back-edge hazard in loop {name}: needs {extra} more states before {c.text}")
            seq.append(c)

    def text(self):
        out = []
        for i in self.items:
            if i.kind == "label" or i.text.startswith("."):
                out.append(i.text)
            else:
                out.append("    " + i.text)
        return "\n".join(out) + "\n"
```

```python
import sys, math, struct
sys.path.insert(0, "gen")
from asmlib import Asm

NAME = "concat_heads__softmax_full_mha__sliding_local_dilated__prompt"
WS_QF = 0
WS_KV = 4 << 20
WS_OF = 12 << 20
WS_FL = 16 << 20
FL_KV = WS_FL
FL_Q = WS_FL + 4096
FL_O = WS_FL + 8192
WS_DBG = 20 << 20
WS_BYTES = 32 << 20
CSCALE = (28 ** -0.5) * math.log2(math.e)
M_OFFSET = 32.0
STAMPS = False
FUSED = False
ST = " sc1"
LD = " sc1"
OUT_ST = ""
WBIAS = 4096
MFMA = "v_mfma_f32_32x32x16_bf16"


def f32(x):
    return "0x%08x" % struct.unpack("<I", struct.pack("<f", x))[0]


def vr(b, n, k="v"):
    return f"{k}[{b}:{b + n - 1}]"


def srd(a, d, lo, hi, nbytes):
    a(f"s_mov_b32 s{d}, s{lo}")
    a(f"s_and_b32 s{d + 1}, s{hi}, 0xffff")
    a(f"s_mov_b32 s{d + 2}, {nbytes}")
    a(f"s_mov_b32 s{d + 3}, 0x20000")


_stamp_n = [0]


def stamp(a, name=""):
    if STAMPS:
        i = _stamp_n[0]
        _stamp_n[0] += 1
        assert i < 15
        if i == 0:
            a("s_memrealtime s[94:95]")
        a(f"s_memtime s[{64 + 2 * i}:{65 + 2 * i}]")
        a("s_waitcnt lgkmcnt(0)")
        a.dsq = []


def stamp_dump(a, kidx):
    if not STAMPS:
        return
    n = _stamp_n[0]
    _stamp_n[0] = 0
    a("s_memrealtime s[96:97]")
    a("s_waitcnt lgkmcnt(0)")
    a("s_lshl_b32 s98, s2, 2")
    a("s_add_u32 s98, s98, s23")
    a("s_lshl_b32 s98, s98, 7")
    a(f"s_add_u32 s98, s98, {WS_DBG + kidx * 262144}")
    a("s_add_u32 s100, s4, s98")
    a("s_addc_u32 s101, s5, 0")
    a("v_mov_b32 v0, 0")
    for i in range(n):
        a(f"v_mov_b32 v1, s{64 + 2 * i}")
        a(f"global_store_dword v0, v1, s[100:101] offset:{4 * i}")
    a("v_mov_b32 v1, s94")
    a(f"global_store_dword v0, v1, s[100:101] offset:{4 * 30}")
    a("v_mov_b32 v1, s96")
    a(f"global_store_dword v0, v1, s[100:101] offset:{4 * 31}")


def exec_set(a, lo, hi):
    a(f"s_mov_b32 exec_lo, {lo}")
    a(f"s_mov_b32 exec_hi, {hi}")


def exec_full(a):
    a("s_mov_b64 exec, -1")


def split_negm(a, x, t1, t2, q6, q7, sperm):
    a(f"v_and_b32 v{t1}, 0xffff0000, v{x}")
    a(f"v_sub_f32 v{x}, v{x}, v{t1}")
    a(f"v_and_b32 v{t2}, 0xffff0000, v{x}")
    a(f"v_sub_f32 v{x}, v{x}, v{t2}")
    exec_set(a, 0, -1)
    a(f"v_perm_b32 v{q6}, v{t2}, v{t1}, s{sperm}")
    a(f"v_lshrrev_b32 v{q7}, 16, v{x}")
    exec_full(a)


def max16(a, dst, S, n=16, init=None):
    regs = [S + i for i in range(n)]
    if init is None:
        a(f"v_max3_f32 v{dst}, v{regs[0]}, v{regs[1]}, v{regs[2]}")
        regs = regs[3:]
    while len(regs) >= 2:
        a(f"v_max3_f32 v{dst}, v{dst}, v{regs[0]}, v{regs[1]}")
        regs = regs[2:]
    if regs:
        a(f"v_max_f32 v{dst}, v{dst}, v{regs[0]}")


def xhalf_max(a, m, t):
    a(f"v_mov_b32 v{t}, v{m}")
    a(f"v_permlane32_swap_b32 v{m}, v{t}")
    a(f"v_max_f32 v{m}, v{m}, v{t}")


def common_prologue(a, nwg, end):
    a(f"s_cmp_ge_u32 s2, {nwg}")
    a(f"s_cbranch_scc1 {end}")
    stamp(a)
    a("s_load_dwordx2 s[4:5], s[0:1], 64")
    a("v_lshrrev_b32 v2, 6, v0")
    a("v_and_b32 v1, 63, v0")
    a("v_readfirstlane_b32 s23, v2")


def ws_srd(a):
    srd(a, 8, 4, 5, WS_BYTES)


def band_masks():
    own, prev = [], []
    for r in range(16):
        mo = mp = 0
        for lane in range(64):
            q, h = lane % 32, lane // 32
            key = 8 * (r // 4) + 4 * h + r % 4
            d = q - key
            if 0 <= d <= 14 and d % 2 == 0:
                mo |= 1 << lane
            d = q + 32 - key
            if 0 <= d <= 14 and d % 2 == 0:
                mp |= 1 << lane
        own.append(mo); prev.append(mp)
    return own, prev


def finalize(a, O, T, soff, vlane16, t1, t2, off=0):
    a(f"v_mov_b32 v{t1}, v{O + 12}")
    a(f"v_mov_b32 v{t2}, v{O + 12}")
    a(f"v_permlane32_swap_b32 v{t1}, v{t2}")
    a(f"v_rcp_f32 v{t2}, v{t2}")
    a(f"s_nop 0")
    for i in range(8):
        a(f"v_pk_mul_f32 {vr(O + 2 * i, 2)}, {vr(O + 2 * i, 2)}, {vr(t2, 2)} op_sel_hi:[1,0]")
    for i in range(8):
        a(f"v_cvt_pk_bf16_f32 v{T + i}, v{O + 2 * i}, v{O + 2 * i + 1}")
    exec_set(a, 0, -1)
    a(f"v_mov_b32 v{T + 6}, 0")
    a(f"v_mov_b32 v{T + 7}, 0")
    exec_full(a)
    a.vm(f"buffer_store_dwordx4 {vr(T, 4)}, v{vlane16}, s[8:11], s{soff} offen offset:{off}{ST}", "st")
    a.vm(f"buffer_store_dwordx4 {vr(T + 4, 4)}, v{vlane16}, s[8:11], s{soff} offen offset:{off + 1024}{ST}", "st")


def p1_common(a):
    a("s_load_dwordx2 s[6:7], s[0:1], 0")
    a("s_load_dwordx2 s[28:29], s[0:1], 8")
    a("s_load_dwordx2 s[30:31], s[0:1], 24")
    a("s_load_dwordx2 s[32:33], s[0:1], 32")
    a("s_and_b32 s3, s2, 7")
    a("s_lshr_b32 s24, s2, 3")
    a("s_lshr_b32 s20, s3, 2")
    a("s_and_b32 s25, s3, 1")
    a("s_lshl_b32 s25, s25, 3")
    a("s_and_b32 s27, s24, 7")
    a("s_add_u32 s21, s27, s25")
    a("s_lshr_b32 s25, s3, 1")
    a("s_and_b32 s25, s25, 1")
    a("s_lshl_b32 s25, s25, 2")
    a("s_lshr_b32 s24, s24, 3")
    a("s_add_u32 s22, s24, s25")
    a("s_lshl_b32 s24, s24, 1")
    a("s_add_u32 s34, s27, s24")
    a("s_sub_u32 s35, s34, 7")
    a("s_cmp_ge_u32 s34, 7")
    a("s_cselect_b32 s34, s35, s34")
    a("s_lshl_b32 s26, s21, 2")
    a("s_add_u32 s26, s26, s23")
    a("s_mul_i32 s35, s26, 28672")
    a("s_mul_i32 s36, s23, 43008")
    a("v_lshrrev_b32 v2, 3, v1")
    a("v_lshrrev_b32 v3, 4, v1")
    a("v_and_b32 v8, 7, v1")
    a("v_xor_b32 v3, v3, v8")
    a("v_mul_u32_u24 v9, 896, v2")
    a("v_lshl_add_u32 v4, v3, 4, v9")
    a("v_xor_b32 v3, 4, v3")
    a("v_lshl_add_u32 v5, v3, 4, v9")
    a("v_add_u32 v5, 6144, v5")
    a("v_add_u32 v6, 12288, v4")
    a("v_add_u32 v7, 12288, v5")
    a("s_mul_i32 s27, s22, 112")
    a(f"s_add_u32 s27, s27, {WBIAS}")
    a("v_mul_u32_u24 v8, 2688, v2")
    a("v_bfe_u32 v2, v1, 2, 1")
    a("v_bfe_u32 v3, v1, 4, 1")
    a("v_xor_b32 v2, v2, v3")
    a("v_mul_u32_u24 v2, 48, v2")
    a("v_and_b32 v3, 3, v1")
    a("v_lshl_add_u32 v2, v3, 4, v2")
    a("v_add3_u32 v8, v8, v2, s27")
    a("s_waitcnt lgkmcnt(0)")
    a("s_cmp_eq_u32 s20, 0")
    a("s_cselect_b32 s6, s6, s30")
    a("s_cselect_b32 s7, s7, s31")
    a("s_cselect_b32 s28, s28, s32")
    a("s_cselect_b32 s29, s29, s33")
    srd(a, 12, 6, 7, 2048 * 896)
    a(f"s_sub_u32 s28, s28, {WBIAS}")
    a("s_subb_u32 s29, s29, 0")
    srd(a, 16, 28, 29, 448 * 2688 + WBIAS)
    ws_srd(a)


def chunk_offsets(a, i):
    if i > 0:
        a("s_add_u32 s34, s34, 1")
        a("s_cmp_eq_u32 s34, 7")
        a("s_cselect_b32 s34, 0, s34")
    a(f"s_lshl_b32 s{40 + i}, s34, 7")
    a(f"s_add_u32 s{40 + i}, s{40 + i}, s35")
    a(f"s_mul_i32 s{47 + i}, s34, 172032")
    a(f"s_add_u32 s{47 + i}, s{47 + i}, s36")


def xread_bases(a, d, sbase):
    a("v_and_b32 v2, 31, v1")
    a("v_bfe_u32 v3, v1, 1, 3")
    a(f"v_lshrrev_b32 v{d}, 5, v1")
    a(f"v_xor_b32 v3, v3, v{d}")
    a("v_lshlrev_b32 v2, 7, v2")
    a(f"v_add_u32 v2, {sbase}, v2")
    for s4 in range(4):
        a(f"v_xor_b32 v{d + s4}, {2 * s4}, v3")
        a(f"v_lshl_add_u32 v{d + s4}, v{d + s4}, 4, v2")


def wread_bases(a, d, base, hstride):
    a("v_lshrrev_b32 v2, 5, v1")
    a(f"v_mul_u32_u24 v2, {hstride}, v2")
    a("v_bfe_u32 v3, v1, 2, 2")
    a("v_lshl_add_u32 v2, v3, 7, v2")
    a("v_bfe_u32 v3, v1, 4, 1")
    a("v_lshl_add_u32 v2, v3, 5, v2")
    a("v_and_b32 v3, 3, v1")
    a("v_lshl_add_u32 v2, v3, 3, v2")
    a(f"v_add_u32 v2, {base}, v2")
    a("v_bfe_u32 v3, v1, 3, 1")
    a(f"v_lshl_add_u32 v{d}, v3, 6, v2")
    a("v_xor_b32 v3, 1, v3")
    a(f"v_lshl_add_u32 v{d + 1}, v3, 6, v2")
    a(f"v_add_u32 v{d + 1}, 8, v{d + 1}")


def vpad_reg(a, d):
    a("v_and_b32 v2, 31, v1")
    a(f"v_mov_b32 v{d}, 0")
    a("v_mov_b32 v3, 0x3f803f80")
    a("v_cmp_eq_u32 vcc, 28, v2")
    a(f"v_cndmask_b32 v{d}, v{d}, v3, vcc")


def flag_store(a, soff_sgpr, nflags=1):
    if not FUSED:
        return
    a("s_waitcnt vmcnt(0)")
    a.vmq = []
    get_tag(a)
    a("v_mov_b32 v2, 0")
    a("v_mov_b32 v8, s60")
    a("v_mov_b32 v9, s61")
    a("v_mov_b32 v10, s60")
    a("v_mov_b32 v11, s61")
    exec_set(a, 1, 0)
    if nflags == 1:
        a.vm(f"buffer_store_dwordx2 v[8:9], v2, s[8:11], s{soff_sgpr} offen sc1", "fl")
    else:
        a.vm(f"buffer_store_dwordx4 v[8:11], v2, s[8:11], s{soff_sgpr} offen sc1", "fl")
    exec_full(a)


_lbl = [0]


def get_tag(a):
    n = _lbl[0]; _lbl[0] += 1
    a("s_cmp_lg_u32 s60, 0")
    a(f"s_cbranch_scc1 TAG_OK{n}")
    a("s_load_dwordx2 s[62:63], s[0:1], 56")
    a("v_mov_b32 v2, 0")
    a("s_waitcnt lgkmcnt(0)")
    a(f"TAG_L{n}:")
    a("global_load_dwordx2 v[8:9], v2, s[62:63] sc1")
    a("s_waitcnt vmcnt(0)")
    a("v_readfirstlane_b32 s60, v8")
    a("v_readfirstlane_b32 s61, v9")
    a("s_nop 1")
    a("s_cmp_eq_u32 s60, 0")
    a(f"s_cbranch_scc1 TAG_L{n}")
    a(f"TAG_OK{n}:")


def flag_wait(a, soff_sgpr, n):
    if not FUSED:
        return
    get_tag(a)
    k = _lbl[0]; _lbl[0] += 1
    a(f"v_and_b32 v2, {n - 1}, v1")
    a("v_lshlrev_b32 v2, 3, v2")
    a(f"POLL{k}:")
    a(f"buffer_load_dwordx2 v[8:9], v2, s[8:11], s{soff_sgpr} offen sc1")
    a("s_waitcnt vmcnt(0)")
    a("v_cmp_ne_u64 vcc, s[60:61], v[8:9]")
    a("s_nop 1")
    a(f"s_cbranch_vccnz POLL{k}")
    a.vmq = []


class Sprinkle:
    def __init__(self):
        self.q = []
        self.open = set([None])

    def add(self, gate, fn):
        self.q.append((gate, fn))

    def release(self, gate):
        self.open.add(gate)

    def emit(self, n=1):
        for _ in range(n):
            if self.q and self.q[0][0] in self.open:
                self.q.pop(0)[1]()

    def flush(self):
        while self.q:
            assert self.q[0][0] in self.open
            self.q.pop(0)[1]()


def p1a(a):
    SL = 32768
    ACC = 16
    WF = 112
    VW = 160
    XB = 166
    WB = 178
    a("s_lshl_b32 s37, s23, 12")
    a("s_add_u32 s38, s37, 16384")

    def x_ops(i):
        ops = []
        for q in range(4):
            def f(q=q):
                if q == 0:
                    a(f"s_add_u32 m0, s37, {(i % 5) * SL}")
                a.vm(f"buffer_load_dwordx4 v{4 + q}, s[12:15], s{40 + i} offen offset:{1024 * q} lds", f"i{i}")
            ops.append(f)
        return ops

    def w_ops(n):
        ops = []
        if n < 7:
            for j in range(4):
                def f(j=j):
                    if j == 0:
                        a(f"s_add_u32 m0, s38, {(n % 5) * SL}")
                    a.vm(f"buffer_load_dwordx4 v{VW + j}, s[16:19], s{47 + n} offen offset:{1024 * j} lds", f"i{n}")
                ops.append(f)
        else:
            for u in range(4):
                c = 4 * (n - 7) + u
                if c > 6:
                    continue
                for rg in range(2):
                    def f(c=c, u=u, rg=rg):
                        if rg == 0:
                            a(f"s_add_u32 m0, s37, {(n % 5) * SL + (u // 2) * 16384 + (u % 2) * 1024}")
                        a.vm(f"buffer_load_dwordx4 v{VW + 4 + rg}, s[16:19], s{47 + c} offen offset:{2048 * rg} lds", f"i{n}")
                    ops.append(f)
        return ops

    chunk_offsets(a, 0)
    for f in x_ops(0): f()
    a(f"v_add_u32 v{VW}, 896, v8")
    a(f"v_add_u32 v{VW + 1}, {1792 - 1024}, v8")
    a(f"v_add_u32 v{VW + 2}, {896 + 21504 - 2048}, v8")
    a(f"v_add_u32 v{VW + 3}, {1792 + 21504 - 3072}, v8")
    for f in w_ops(0): f()
    for i in range(1, 7):
        chunk_offsets(a, i)
    a(f"v_mov_b32 v{VW + 4}, v8")
    a(f"v_add_u32 v{VW + 5}, {21504 - 2048}, v8")
    xread_bases(a, XB, "s37")
    wread_bases(a, WB, 0, 2048)
    for j in range(4):
        a(f"v_add_u32 v{XB + 4 + j}, {2 * SL}, v{XB + j}")
        a(f"v_add_u32 v{XB + 8 + j}, {4 * SL}, v{XB + j}")
    for j in range(2):
        a(f"v_add_u32 v{WB + 2 + j}, {2 * SL}, v{WB + j}")
        a(f"v_add_u32 v{WB + 4 + j}, {4 * SL}, v{WB + j}")
    for f in x_ops(1) + w_ops(1): f()
    sp = Sprinkle()
    for n in range(2, 9):
        gate = None if n < 5 else n - 3
        for f in (x_ops(n) if n < 7 else []) + w_ops(n):
            sp.add(gate, f)
    stamp(a)

    steps = [(n, n, s4, (0, 1, 2, 3)) for n in range(7) for s4 in range(4)]
    steps += [(7 + c // 4, c, s4, (4, 5)) for c in range(7) for s4 in range(4)]
    LA1, LA2 = 2, 4

    def fragreg(k, part):
        idx = 4 * k + part if k < 28 else 112 + 2 * (k - 28) + part
        return WF + 4 * (idx % 12)

    done_b = set()

    def barrier_for(n):
        if n in done_b:
            return
        done_b.add(n)
        a.vm_wait(f"i{n}")
        if n == 0:
            stamp(a)
        a("s_barrier")
        sp.release(n)

    def reads(k, part):
        n, c, s4, tiles = steps[k]
        barrier_for(n)
        slot = n % 5
        if part == 0 and k < 28:
            a.ds(f"ds_read_b128 {vr(4 * k, 4, 'a')}, v{XB + 4 * (slot // 2) + s4} offset:{(slot % 2) * SL}", f"x{k}")
        t = tiles[part]
        hh = t % 2
        if n < 7:
            off = 16384 + s4 * 4096 + (t // 2) * 1024
        else:
            u = c % 4
            off = (u // 2) * 16384 + s4 * 4096 + (u % 2) * 1024
        off += (slot % 2) * SL
        d = fragreg(k, part)
        b = WB + 2 * (slot // 2) + hh
        a.ds(f"ds_read_b64_tr_b16 {vr(d, 2)}, v{b} offset:{off}", f"w{k}_{part}")
        a.ds(f"ds_read_b64_tr_b16 {vr(d + 2, 2)}, v{b} offset:{off + 512}", f"w{k}_{part}")

    KP, VP, QP, SD = 184, 200, 216, 16

    def kv_epilogue():
        a("v_lshlrev_b32 v4, 4, v1")
        vpad_reg(a, 5)
        a("s_lshl_b32 s27, s22, 7")
        a("s_add_u32 s27, s27, s26")
        a("s_lshl_b32 s29, s27, 12")
        a(f"s_add_u32 s29, s29, {WS_KV}")
        a(f"s_add_u32 s30, s29, {64 * 4096}")
        for hh in range(2):
            AK, AV = ACC + 16 * hh, ACC + 32 + 16 * hh
            kp, vp = KP + 8 * hh, VP + 8 * hh
            so = 29 + hh
            for i in range(8):
                a(f"v_cvt_pk_bf16_f32 v{kp + i}, v{AK + 2 * i}, v{AK + 2 * i + 1}")
            exec_set(a, 0, -1)
            a(f"v_mov_b32 v{kp + 6}, 0x3f803f80")
            a(f"v_mov_b32 v{kp + 7}, 0x3f80")
            exec_full(a)
            a.vm(f"buffer_store_dwordx4 {vr(kp, 4)}, v4, s[8:11], s{so} offen{ST}", "kv")
            a.vm(f"buffer_store_dwordx4 {vr(kp + 4, 4)}, v4, s[8:11], s{so} offen offset:1024{ST}", "kv")
            for i in range(8):
                a(f"v_cvt_pk_bf16_f32 v{vp + i}, v{AV + 2 * i}, v{AV + 2 * i + 1}")
            exec_set(a, "0xf0000000", "0xf0000000")
            for i in range(8):
                a(f"v_mov_b32 v{vp + i}, v5")
            exec_full(a)
            a.vm(f"buffer_store_dwordx4 {vr(vp, 4)}, v4, s[8:11], s{so} offen offset:2048{ST}", "kv")
            a.vm(f"buffer_store_dwordx4 {vr(vp + 4, 4)}, v4, s[8:11], s{so} offen offset:3072{ST}", "kv")

    seq = [(k, p) for k in range(len(steps)) for p in range(len(steps[k][3]))]
    AHEAD = 8
    rd = 0
    for _ in range(AHEAD):
        reads(*seq[rd]); rd += 1
    nm = 0
    for idx, (k, part) in enumerate(seq):
        n, c, s4, tiles = steps[k]
        t = tiles[part]
        kx = k if k < 28 else k - 28
        a.ds_wait(f"x{k}", f"w{k}_{part}")
        w = vr(fragreg(k, part), 4)
        x = vr(4 * kx, 4, "a")
        acc = vr(ACC + 16 * t, 16)
        cc = "0" if (c == 0 and s4 == 0) else acc
        if t in (2, 3):
            a(f"{MFMA} {acc}, {x}, {w}, {cc}")
        else:
            a(f"{MFMA} {acc}, {w}, {x}, {cc}")
        nm += 1
        if rd < len(seq):
            reads(*seq[rd]); rd += 1
        if nm % 2 == 0:
            sp.emit()
        if k == 27 and part == 3:
            sp.flush()
            stamp(a)
            kv_epilogue()
            stamp(a)
        if FUSED and k == 45 and part == 1:
            a("s_lshl_b32 s31, s22, 6")
            a("s_add_u32 s31, s31, s26")
            a("s_lshl_b32 s31, s31, 3")
            a(f"s_add_u32 s31, s31, {FL_KV}")
            flag_store(a, 31)
    stamp(a)
    a(f"s_mov_b32 s36, {f32(CSCALE)}")
    a(f"s_mov_b32 s37, {f32(CSCALE)}")
    a("s_mov_b32 s38, 0x07060302")
    a("s_lshl_b32 s28, s27, 11")
    a(f"s_add_u32 s29, s28, {64 * 2048}")
    for hh in range(2):
        AQ = ACC + 64 + 16 * hh
        qp, kp, sd = QP + 8 * hh, KP + 8 * hh, SD + 16 * hh
        for i in range(8):
            a(f"v_pk_mul_f32 {vr(AQ + 2 * i, 2)}, {vr(AQ + 2 * i, 2)}, s[36:37]")
        for i in range(8):
            a(f"v_cvt_pk_bf16_f32 v{qp + i}, v{AQ + 2 * i}, v{AQ + 2 * i + 1}")
        exec_set(a, 0, -1)
        a(f"v_mov_b32 v{qp + 6}, 0")
        a(f"v_mov_b32 v{qp + 7}, 0")
        exec_full(a)
        a(f"{MFMA} {vr(sd, 16)}, {vr(kp, 4)}, {vr(qp, 4)}, 0")
        a(f"{MFMA} {vr(sd, 16)}, {vr(kp + 4, 4)}, {vr(qp + 4, 4)}, {vr(sd, 16)}")
        a.vm(f"buffer_store_dwordx4 {vr(qp, 4)}, v4, s[8:11], s{28 + hh} offen{ST}", "q")
    for hh in range(2):
        qp, sd = QP + 8 * hh, SD + 16 * hh
        max16(a, 12, sd)
        xhalf_max(a, 12, 13)
        a(f"v_sub_f32 v12, {f32(-M_OFFSET)}, v12")
        split_negm(a, 12, 13, 14, qp + 6, qp + 7, 38)
        a.vm(f"buffer_store_dwordx4 {vr(qp + 4, 4)}, v4, s[8:11], s{28 + hh} offen offset:1024{ST}", "q")
    if FUSED:
        a(f"s_add_u32 s31, s31, {FL_Q - FL_KV}")
        flag_store(a, 31)
    stamp(a)


def p1b(a):
    XS = 20480
    WR = 61440
    WSL = 24576
    ACC = 16
    WF = 128
    XF = 184
    VW = 200
    VH = 206
    XB = 208
    WB = 216
    BO, BP = 224, 240
    a("s_lshl_b32 s37, s23, 12")
    a("s_mul_i32 s38, s23, 6144")
    a(f"s_add_u32 s38, s38, {WR}")
    a("s_lshl_b32 s39, s23, 9")
    a(f"s_add_u32 s39, s39, {16384 + 2048}")
    a("s_lshl_b32 s54, s21, 7")
    a("s_sub_u32 s54, s54, 16")
    a("s_max_i32 s54, s54, 0")
    a("s_lshl_b32 s55, s23, 2")
    a("s_add_u32 s54, s54, s55")
    a("s_mul_i32 s54, s54, 896")
    a("s_sub_u32 s54, s54, s35")

    def item_ops(i):
        slot = i % 3
        ops = []
        for q in range(4):
            def f(q=q):
                if q == 0:
                    a(f"s_add_u32 m0, s37, {slot * XS}")
                a.vm(f"buffer_load_dwordx4 v{4 + q}, s[12:15], s{40 + i} offen offset:{1024 * q} lds", f"c{i}")
            ops.append(f)

        def fh():
            a(f"s_add_u32 m0, s39, {slot * XS}")
            a(f"s_add_u32 s55, s54, s{40 + i}")
            a("s_mov_b32 exec_hi, 0")
            a.vm(f"buffer_load_dwordx4 v{VH}, s[12:15], s55 offen lds", f"c{i}")
            a("s_mov_b32 exec_hi, -1")
        ops.append(fh)
        for rg in range(2):
            for j in range(3):
                def f(rg=rg, j=j):
                    if j == 0:
                        a(f"s_add_u32 m0, s38, {slot * WSL + 3072 * rg}")
                    a.vm(f"buffer_load_dwordx4 v{VW + 3 * rg + j}, s[16:19], s{47 + i} offen offset:{1024 * j} lds", f"c{i}")
                ops.append(f)
        return ops

    a("s_lshl_b32 s55, s23, 1")
    a("v_lshrrev_b32 v2, 3, v1")
    a("v_lshrrev_b32 v3, 4, v1")
    a("v_add_u32 v3, s55, v3")
    a("v_and_b32 v9, 7, v1")
    a("v_xor_b32 v3, v3, v9")
    a("v_and_b32 v3, 7, v3")
    a("v_mul_u32_u24 v2, 896, v2")
    a(f"v_lshl_add_u32 v{VH}, v3, 4, v2")
    for rg in range(2):
        for j in range(3):
            a(f"v_add_u32 v{VW + 3 * rg + j}, {((896 - 1024) * j + 21504 * rg) & 0xffffffff}, v8")
    chunk_offsets(a, 0)
    for f in item_ops(0): f()
    for i in range(1, 7):
        chunk_offsets(a, i)
    xread_bases(a, XB, "s37")
    a("s_sub_u32 s55, 16384, s37")
    for s4 in range(4):
        a(f"v_add_u32 v{XB + 4 + s4}, s55, v{XB + s4}")
    wread_bases(a, WB, WR, 3072)
    a("s_and_b32 s55, s23, 1")
    a("s_cmp_eq_u32 s55, 1")
    a("s_cselect_b64 s[56:57], -1, 0")
    a(f"v_cndmask_b32 v{WB + 2}, v{WB}, v{WB + 1}, s[56:57]")
    a("s_lshr_b32 s55, s23, 1")
    a("s_add_u32 s55, s55, 1")
    a("s_lshl_b32 s55, s55, 10")
    a(f"v_add_u32 v{WB + 2}, s55, v{WB + 2}")
    for j in range(3):
        a(f"v_add_u32 v{WB + 3 + j}, {2 * WSL}, v{WB + j}")
    for f in item_ops(1): f()
    sp = Sprinkle()
    for i in range(2, 7):
        for f in item_ops(i):
            sp.add(None if i == 2 else i - 3, f)
    own, prev = band_masks()
    a("s_cmp_eq_u32 s26, 0")
    a("s_cselect_b64 s[58:59], 0, -1")
    a(f"v_mov_b32 v10, {f32(-1e30)}")
    a("v_mov_b32 v11, 0")
    sb = Sprinkle()
    for r in range(16):
        for isprev in range(2):
            m = prev[r] if isprev else own[r]

            def f(r=r, isprev=isprev, m=m):
                d = (BP if isprev else BO) + r
                if m == 0:
                    a(f"v_mov_b32 v{d}, v10")
                    return
                a(f"s_mov_b32 s56, 0x{m & 0xffffffff:x}")
                a(f"s_mov_b32 s57, 0x{m >> 32:x}")
                if isprev:
                    a("s_and_b64 s[56:57], s[56:57], s[58:59]")
                a(f"v_cndmask_b32 v{d}, v10, v11, s[56:57]")
            sb.add(None, f)
    stamp(a)

    def reads(k, part):
        c, s4 = divmod(k, 4)
        slot = c % 3
        buf = k % 2
        if part == 0:
            a.ds(f"ds_read_b128 {vr(XF + 8 * buf, 4)}, v{XB + s4} offset:{slot * XS}", f"x{k}")
        if part == 6:
            a.ds(f"ds_read_b128 {vr(XF + 8 * buf + 4, 4)}, v{XB + 4 + s4} offset:{slot * XS}", f"w{k}_6")
        hh, sec = (divmod(part, 3) if part < 6 else (2, 0))
        b = WB + hh + (3 if slot == 2 else 0)
        off = (slot % 2) * WSL + s4 * 6144 + sec * 1024
        d = WF + 28 * buf + 4 * part
        a.ds(f"ds_read_b64_tr_b16 {vr(d, 2)}, v{b} offset:{off}", f"w{k}_{part}")
        a.ds(f"ds_read_b64_tr_b16 {vr(d + 2, 2)}, v{b} offset:{off + 512}", f"w{k}_{part}")

    a.vm_wait("c0")
    stamp(a)
    a("s_barrier")
    for part in range(7):
        reads(0, part)
    nm = 0
    for k in range(28):
        c, s4 = divmod(k, 4)
        buf = k % 2
        for part in range(7):
            a.ds_wait(f"x{k}", f"w{k}_{part}")
            w = vr(WF + 28 * buf + 4 * part, 4)
            x = vr(XF + 8 * buf + (4 if part == 6 else 0), 4)
            acc = vr(ACC + 16 * part, 16)
            cc = "0" if k == 0 else acc
            if part in (2, 5):
                a(f"{MFMA} {acc}, {x}, {w}, {cc}")
            else:
                a(f"{MFMA} {acc}, {w}, {x}, {cc}")
            if k < 27:
                reads(k + 1, part)
            nm += 1
            if nm % 2 == 0:
                sp.emit()
            elif k >= 12 and not sp.q:
                sb.emit()
        if s4 == 2 and c < 6:
            a.vm_wait(f"c{c + 1}", extra=" lgkmcnt(0)")
            a.dsq = []
            a("s_barrier")
            sp.release(c)
    sp.flush(); sb.flush()
    stamp(a)
    QP, KP, VP, HP = 128, 144, 160, 176
    PK, PV = 184, 200
    EX = WR + WSL
    HX = XS
    a(f"s_mov_b32 s36, {f32(CSCALE)}")
    a(f"s_mov_b32 s37, {f32(CSCALE)}")
    a("v_lshlrev_b32 v4, 4, v1")
    vpad_reg(a, 5)
    a("s_mul_i32 s55, s23, 6144")
    a(f"s_add_u32 s55, s55, {EX}")
    a("v_add_u32 v6, s55, v4")
    a("s_cmp_ge_u32 s23, 2")
    a("s_cselect_b32 s56, 0x3f80, 0")
    a("v_and_b32 v2, 31, v1")
    a("v_lshlrev_b32 v2, 6, v2")
    a("v_lshrrev_b32 v3, 5, v1")
    a("v_lshl_add_u32 v7, v3, 3, v2")
    a(f"v_add_u32 v7, {HX}, v7")
    a("s_lshl_b32 s55, s23, 11")
    a("v_add_u32 v2, s55, v7")
    for hh in range(2):
        AK, AV = ACC + 48 * hh + 16, ACC + 48 * hh + 32
        kp, vp = KP + 8 * hh, VP + 8 * hh
        for i in range(8):
            a(f"v_cvt_pk_bf16_f32 v{kp + i}, v{AK + 2 * i}, v{AK + 2 * i + 1}")
        for i in range(8):
            a(f"v_cvt_pk_bf16_f32 v{vp + i}, v{AV + 2 * i}, v{AV + 2 * i + 1}")
    AH = ACC + 96
    for i in range(8):
        a(f"v_cvt_pk_bf16_f32 v{HP + i}, v{AH + 2 * i}, v{AH + 2 * i + 1}")
    exec_set(a, 0, -1)
    for hh in range(2):
        a(f"v_mov_b32 v{KP + 8 * hh + 6}, 0")
        a(f"v_mov_b32 v{KP + 8 * hh + 7}, 0")
    a(f"v_mov_b32 v{HP + 6}, s56")
    a(f"v_mov_b32 v{HP + 7}, 0")
    exec_set(a, "0xf0000000", "0xf0000000")
    for i in range(16):
        a(f"v_mov_b32 v{VP + i}, v5")
    exec_full(a)
    for hh in range(2):
        kp, vp = KP + 8 * hh, VP + 8 * hh
        a.ds(f"ds_write_b128 v6, {vr(kp, 4)} offset:{3072 * hh}")
        a.ds(f"ds_write_b128 v6, {vr(kp + 4, 4)} offset:{3072 * hh + 1024}")
        a.ds(f"ds_write_b128 v6, {vr(vp + 4, 4)} offset:{3072 * hh + 2048}")
    for g in range(4):
        a.ds(f"ds_write_b64 v2, {vr(HP + 2 * g, 2)} offset:{16 * g}")
    for hh in range(2):
        AQ = ACC + 48 * hh
        qp = QP + 8 * hh
        for i in range(8):
            a(f"v_pk_mul_f32 {vr(AQ + 2 * i, 2)}, {vr(AQ + 2 * i, 2)}, s[36:37]")
        for i in range(8):
            a(f"v_cvt_pk_bf16_f32 v{qp + i}, v{AQ + 2 * i}, v{AQ + 2 * i + 1}")
    exec_set(a, 0, -1)
    for hh in range(2):
        a(f"v_mov_b32 v{QP + 8 * hh + 6}, 0")
        a(f"v_mov_b32 v{QP + 8 * hh + 7}, 0")
    exec_full(a)
    SO = [16, 48]; SP = [32, 64]; PP = [80, 92]; OB = [104, 16]
    for hh in range(2):
        a(f"{MFMA} {vr(SO[hh], 16)}, {vr(KP + 8 * hh, 4)}, {vr(QP + 8 * hh, 4)}, {vr(BO, 16)}")
        a(f"{MFMA} {vr(SO[hh], 16)}, {vr(KP + 8 * hh + 4, 4)}, {vr(QP + 8 * hh + 4, 4)}, {vr(SO[hh], 16)}")
    a.ds_drain()
    a("s_barrier")
    a("s_cmp_eq_u32 s23, 0")
    a("s_cbranch_scc1 P1B_W0")
    a("v_subrev_u32 v9, 6144, v6")
    for hh in range(2):
        a(f"ds_read_b128 {vr(PK + 8 * hh, 4)}, v9 offset:{3072 * hh}")
        a(f"ds_read_b128 {vr(PK + 8 * hh + 4, 4)}, v9 offset:{3072 * hh + 1024}")
        a(f"ds_read_b128 {vr(PV + 4 * hh, 4)}, v9 offset:{3072 * hh + 2048}")
    a("s_branch P1B_J")
    a("P1B_W0:")
    a("v_bfe_u32 v2, v1, 2, 2")
    a("v_lshrrev_b32 v3, 5, v1")
    a("v_lshl_add_u32 v2, v3, 2, v2")
    a("v_lshlrev_b32 v2, 6, v2")
    a("v_bfe_u32 v3, v1, 4, 1")
    a("v_lshl_add_u32 v2, v3, 5, v2")
    a("v_and_b32 v3, 3, v1")
    a("v_lshl_add_u32 v2, v3, 3, v2")
    a("v_add_u32 v3, 2048, v7")
    for hh in range(2):
        b = 7 if hh == 0 else 3
        a(f"ds_read2_b64 {vr(PK + 8 * hh, 4)}, v{b} offset0:0 offset1:2")
        a(f"ds_read2_b64 {vr(PK + 8 * hh + 4, 4)}, v{b} offset0:4 offset1:6")
        a(f"ds_read_b64_tr_b16 {vr(PV + 4 * hh, 2)}, v2 offset:{HX + (2 + hh) * 2048 + 1024}")
        a(f"ds_read_b64_tr_b16 {vr(PV + 4 * hh + 2, 2)}, v2 offset:{HX + (2 + hh) * 2048 + 1536}")
    a("P1B_J:")
    a("s_add_u32 s38, s26, 64")
    a("s_lshl_b32 s38, s38, 4")
    a("s_lshl_b32 s39, s22, 1")
    a("s_add_u32 s39, s38, s39")
    a("s_lshl_b32 s38, s39, 11")
    a(f"s_add_u32 s38, s38, {WS_OF}")
    for hh in range(2):
        max16(a, 8 + 2 * hh, SO[hh])
    a("s_waitcnt lgkmcnt(0)")
    for hh in range(2):
        a(f"{MFMA} {vr(SP[hh], 16)}, {vr(PK + 8 * hh, 4)}, {vr(QP + 8 * hh, 4)}, {vr(BP, 16)}")
        a(f"{MFMA} {vr(SP[hh], 16)}, {vr(PK + 8 * hh + 4, 4)}, {vr(QP + 8 * hh + 4, 4)}, {vr(SP[hh], 16)}")
    for hh in range(2):
        m = 8 + 2 * hh
        max16(a, m, SP[hh] + 8, n=8, init=True)
        a(f"v_mov_b32 v{m + 1}, v{m}")
        a(f"v_permlane32_swap_b32 v{m}, v{m + 1}")
        a(f"v_max_f32 v{m}, v{m}, v{m + 1}")
        regs = [SO[hh] + r for r in range(16)] + [SP[hh] + r for r in range(8, 16)]
        for r in regs[::2]:
            a(f"v_pk_add_f32 {vr(r, 2)}, {vr(r, 2)}, {vr(m, 2)} op_sel_hi:[1,0] neg_lo:[0,1] neg_hi:[0,1]")
        for r in regs:
            a(f"v_exp_f32 v{r}, v{r}")
        for i in range(8):
            a(f"v_cvt_pk_bf16_f32 v{PP[hh] + i}, v{SO[hh] + 2 * i}, v{SO[hh] + 2 * i + 1}")
        for i in range(4):
            a(f"v_cvt_pk_bf16_f32 v{PP[hh] + 8 + i}, v{SP[hh] + 8 + 2 * i}, v{SP[hh] + 8 + 2 * i + 1}")
        ob = vr(OB[hh], 16)
        a(f"{MFMA} {ob}, {vr(VP + 8 * hh, 4)}, {vr(PP[hh], 4)}, 0")
        a(f"{MFMA} {ob}, {vr(VP + 8 * hh + 4, 4)}, {vr(PP[hh] + 4, 4)}, {ob}")
        a(f"{MFMA} {ob}, {vr(PV + 4 * hh, 4)}, {vr(PP[hh] + 8, 4)}, {ob}")
    finalize(a, OB[0], QP, 38, 4, 8, 10)
    finalize(a, OB[1], QP + 8, 38, 4, 8, 10, off=2048)
    if FUSED:
        a("s_lshl_b32 s39, s39, 3")
        a(f"s_add_u32 s39, s39, {FL_O}")
        flag_store(a, 39, nflags=2)
    stamp(a)


def p1(a):
    p1_common(a)
    a("s_cmp_lg_u32 s20, 0")
    a("s_cbranch_scc1 P1B")
    n0 = _stamp_n[0]
    p1a(a)
    a("s_branch P1_DONE")
    a("P1B:")
    a.vmq = []; a.dsq = []
    n1 = _stamp_n[0]
    _stamp_n[0] = n0
    p1b(a)
    while _stamp_n[0] < n1:
        stamp(a)
    a("P1_DONE:")
    a.vmq = []; a.dsq = []


def p2(a, after_loop=None):
    Q, S0, P0, O = 16, 48, 80, 96
    a("s_and_b32 s3, s2, 7")
    a("s_lshr_b32 s24, s2, 3")
    a("s_lshl_b32 s20, s3, 1")
    a("s_lshr_b32 s25, s24, 4")
    a("s_add_u32 s20, s20, s25")
    a("s_and_b32 s21, s24, 15")
    a("v_lshlrev_b32 v4, 4, v1")
    a("s_lshl_b32 s22, s21, 2")
    a("s_add_u32 s22, s22, s23")
    a("s_lshl_b32 s31, s20, 6")
    a("s_lshl_b32 s32, s23, 4")
    a("s_add_u32 s32, s32, s31")
    a("s_lshl_b32 s32, s32, 12")
    a(f"s_add_u32 s32, s32, {WS_KV}")
    if not FUSED:
        a("s_waitcnt lgkmcnt(0)")
        ws_srd(a)
    a("s_add_u32 s12, s4, s32")
    a("s_addc_u32 s13, s5, 0")
    a("s_and_b32 s13, s13, 0xffff")
    a("s_mov_b32 s14, 65536")
    a("s_mov_b32 s15, 0x20000")
    a("v_mov_b32 v5, v4")
    for i in range(4):
        a(f"s_add_u32 s{44 + i}, s21, {i}")
        a(f"s_and_b32 s{44 + i}, s{44 + i}, 15")
        a(f"s_lshl_b32 s{44 + i}, s{44 + i}, 12")
    for i in range(8):
        a(f"v_accvgpr_write_b32 a{56 + i}, 0")
    if FUSED:
        a("s_lshr_b32 s33, s20, 1")
        a("s_lshl_b32 s33, s33, 6")
        a("s_lshl_b32 s34, s23, 4")
        a("s_add_u32 s34, s34, s33")
        a("s_lshl_b32 s34, s34, 3")
        a(f"s_add_u32 s34, s34, {FL_KV}")
        flag_wait(a, 34, 16)
        stamp(a)

    def ldK(i):
        a(f"buffer_load_dwordx4 {vr(16 * i, 4, 'a')}, v5, s[12:15], s{44 + i} offen{LD}")
        a(f"buffer_load_dwordx4 {vr(16 * i + 4, 4, 'a')}, v5, s[12:15], s{44 + i} offen offset:1024{LD}")

    def ldV(i):
        a(f"buffer_load_dwordx4 {vr(16 * i + 8, 4, 'a')}, v5, s[12:15], s{44 + i} offen offset:2048{LD}")
        a(f"buffer_load_dwordx4 {vr(16 * i + 12, 4, 'a')}, v5, s[12:15], s{44 + i} offen offset:3072{LD}")

    def ldQ():
        for j in range(4):
            a(f"s_add_u32 s33, s23, {j}")
            a("s_and_b32 s33, s33, 3")
            a(f"s_mov_b32 s{40 + j}, s33")
            a("s_lshl_b32 s34, s21, 2")
            a("s_add_u32 s33, s33, s34")
            a("s_add_u32 s33, s33, s31")
            a("s_lshl_b32 s33, s33, 11")
            a(f"buffer_load_dwordx4 {vr(Q + 8 * j, 4)}, v4, s[8:11], s33 offen{LD}")
            a(f"buffer_load_dwordx4 {vr(Q + 8 * j + 4, 4)}, v4, s[8:11], s33 offen offset:1024{LD}")

    if not FUSED:
        ldQ()
    for i in range(3):
        ldK(i); ldV(i)
    ldK(3)
    for i in range(64):
        a(f"v_mov_b32 v{O + i}, 0")
    for i in range(8):
        a(f"v_mov_b32 v{P0 + 8 + i}, 0")
    if FUSED:
        a("s_lshr_b32 s33, s20, 1")
        a("s_lshl_b32 s33, s33, 6")
        a("s_lshl_b32 s34, s21, 2")
        a("s_add_u32 s34, s34, s33")
        a("s_lshl_b32 s34, s34, 3")
        a(f"s_add_u32 s34, s34, {FL_Q}")
        flag_wait(a, 34, 4)
        stamp(a)
        ldQ()
        a("s_waitcnt vmcnt(0)")
    else:
        a("s_waitcnt vmcnt(12)")
    a("s_lshl_b32 s38, s22, 4")
    a("s_add_u32 s39, s38, s20")
    a("s_lshl_b32 s38, s39, 11")
    a(f"s_add_u32 s38, s38, {WS_OF}")
    stamp(a)
    a(f"{MFMA} {vr(S0, 16)}, {vr(0, 4, 'a')}, {vr(Q, 4)}, 0")
    a(f"{MFMA} {vr(S0, 16)}, {vr(4, 4, 'a')}, {vr(Q + 4, 4)}, {vr(S0, 16)}")
    a("s_mov_b32 s35, 4")
    a("s_mov_b32 s36, 0")
    a("s_nop 7")
    a(".p2align 6")
    a("P2_LOOP:")
    lstart = a.mark()
    for i in range(4):
        for j in range(4):
            n = 4 * i + j
            Sc, Sn = S0 + 16 * (n % 2), S0 + 16 * ((n + 1) % 2)
            Pc, Pp = P0 + 8 * (n % 2), P0 + 8 * ((n + 1) % 2)
            i1, j1 = (i, j + 1) if j < 3 else ((i + 1) % 4, 0)
            i0, j0 = (i, j - 1) if j > 0 else ((i - 1) % 4, 3)
            ex = [f"v_exp_f32 v{Sc + r}, v{Sc + r}" for r in range(16)]
            cv = [f"v_cvt_pk_bf16_f32 v{Pc + r}, v{Sc + 2 * r}, v{Sc + 2 * r + 1}" for r in range(8)]
            if j == 3:
                a("s_waitcnt vmcnt(12)")
            a(f"{MFMA} {vr(Sn, 16)}, {vr(16 * i1, 4, 'a')}, {vr(Q + 8 * j1, 4)}, 0")
            for x in ex[0:4]: a(x)
            a(f"{MFMA} {vr(Sn, 16)}, {vr(16 * i1 + 4, 4, 'a')}, {vr(Q + 8 * j1 + 4, 4)}, {vr(Sn, 16)}")
            for x in ex[4:8]: a(x)
            for x in cv[0:2]: a(x)
            if j == 1:
                a("s_waitcnt vmcnt(12)")
            Oj = vr(O + 16 * j0, 16)
            a(f"{MFMA} {Oj}, {vr(16 * i0 + 8, 4, 'a')}, {vr(Pp, 4)}, {Oj}")
            for x in ex[8:12]: a(x)
            for x in cv[2:4]: a(x)
            a(f"{MFMA} {Oj}, {vr(16 * i0 + 12, 4, 'a')}, {vr(Pp + 4, 4)}, {Oj}")
            for x in ex[12:16]: a(x)
            for x in cv[4:8]: a(x)
            if j == 0:
                ldV((i - 1) % 4)
            if j == 1:
                a(f"s_add_u32 s{44 + i}, s{44 + i}, 16384")
                a(f"s_and_b32 s{44 + i}, s{44 + i}, 0xffff")
                if i == 0:
                    a("s_cmp_eq_u32 s35, 1")
                    a("s_cselect_b32 s36, 0x100000, 0")
                    a("v_add_u32 v5, s36, v4")
            if j == 2:
                ldK(i)
    a("s_sub_u32 s35, s35, 1")
    a("s_cmp_lg_u32 s35, 0")
    a("s_cbranch_scc1 P2_LOOP")
    a.check_backedge(lstart, "p2")
    stamp(a)
    Oj = vr(O + 48, 16)
    a(f"{MFMA} {Oj}, {vr(56, 4, 'a')}, {vr(P0 + 8, 4)}, {Oj}")
    a(f"{MFMA} {Oj}, {vr(60, 4, 'a')}, {vr(P0 + 12, 4)}, {Oj}")
    CB = P2_COMBINE_BASE
    for j in range(1, 4):
        a(f"s_mul_i32 s33, s{40 + j}, 12288")
        a(f"s_add_u32 s33, s33, {CB + (j - 1) * 4096}")
        a(f"v_add_u32 v{5 + j}, s33, v4")
    a("s_mul_i32 s33, s23, 12288")
    a(f"s_add_u32 s33, s33, {CB}")
    a("v_add_u32 v5, s33, v4")
    for j in range(1, 4):
        for k in range(4):
            a(f"ds_write_b128 v{5 + j}, {vr(O + 16 * j + 4 * k, 4)} offset:{1024 * k}")
    if after_loop:
        after_loop(a)
    a("s_waitcnt lgkmcnt(0)")
    a("s_barrier")
    T = S0
    for k in range(12):
        a(f"ds_read_b128 {vr(T + 4 * k, 4)}, v5 offset:{1024 * k}")
    for sl in range(3):
        for k in range(4):
            a(f"s_waitcnt lgkmcnt({11 - (4 * sl + k)})")
            for u in range(2):
                r = 4 * k + 2 * u
                a(f"v_pk_add_f32 {vr(O + r, 2)}, {vr(O + r, 2)}, {vr(T + 16 * sl + r, 2)}")
    a("v_mov_b32 v8, 0")
    a("v_mov_b32 v9, 0")
    a("v_mov_b32 v10, 0")
    a("v_mov_b32 v11, 0")
    for i in range(8):
        a(f"v_pk_fma_f32 v[8:9], {vr(O + 2 * i, 2)}, v[10:11], v[8:9]")
    a(f"v_mov_b32 v10, {f32(2.0 ** 120)}")
    a("v_cmp_u_f32 vcc, v8, v9")
    a(f"v_cmp_nlt_f32 s[44:45], v{O + 12}, v10")
    a("s_and_b32 s44, s45, -1")
    a("s_or_b32 s44, s44, vcc_lo")
    a("s_or_b32 s44, s44, vcc_hi")
    a("s_cmp_lg_u32 s44, 0")
    a("s_cbranch_scc1 P2_SLOW")
    a("P2_FIN:")
    finalize(a, O, S0, 38, 4, 8, 10)
    if FUSED:
        a("s_lshl_b32 s39, s39, 3")
        a(f"s_add_u32 s39, s39, {FL_O}")
        flag_store(a, 39)
    stamp(a)


def p2_slow(a):
    Q, S0, P0, O = 16, 48, 80, 96
    KT = 112
    a("P2_SLOW:")
    a("s_nop 7")
    a("s_lshl_b32 s32, s31, 12")
    a(f"s_add_u32 s32, s32, {WS_KV}")
    a("s_add_u32 s12, s4, s32")
    a("s_addc_u32 s13, s5, 0")
    a("s_and_b32 s13, s13, 0xffff")
    a("s_mov_b32 s14, 262144")
    a("s_mov_b32 s15, 0x20000")
    a("s_mov_b32 s46, 0x07060302")
    if FUSED:
        a("s_lshr_b32 s34, s20, 1")
        a("s_lshl_b32 s34, s34, 9")
        a(f"s_add_u32 s34, s34, {FL_KV}")
        flag_wait(a, 34, 64)
    exec_set(a, 0, -1)
    a(f"v_mov_b32 v{Q + 6}, 0")
    a(f"v_mov_b32 v{Q + 7}, 0")
    exec_full(a)
    a("v_mov_b32 v8, 0xff800000")
    a("v_mov_b32 v5, v4")
    a("s_mov_b32 s35, 64")
    a("P2_SLOW1:")
    a(f"buffer_load_dwordx4 {vr(KT, 4)}, v5, s[12:15], 0 offen{LD}")
    a(f"buffer_load_dwordx4 {vr(KT + 4, 4)}, v5, s[12:15], 0 offen offset:1024{LD}")
    a("s_waitcnt vmcnt(0)")
    a(f"{MFMA} {vr(S0, 16)}, {vr(KT, 4)}, {vr(Q, 4)}, 0")
    a(f"{MFMA} {vr(S0, 16)}, {vr(KT + 4, 4)}, {vr(Q + 4, 4)}, {vr(S0, 16)}")
    a("v_add_u32 v5, 4096, v5")
    max16(a, 8, S0, init=True)
    a("s_nop 7")
    a("s_sub_u32 s35, s35, 1")
    a("s_cmp_lg_u32 s35, 0")
    a("s_cbranch_scc1 P2_SLOW1")
    xhalf_max(a, 8, 9)
    a("v_sub_f32 v8, 0, v8")
    split_negm(a, 8, 9, 10, Q + 6, Q + 7, 46)
    for i in range(16):
        a(f"v_mov_b32 v{O + i}, 0")
    a("v_mov_b32 v5, v4")
    a("s_mov_b32 s35, 64")
    a("P2_SLOW2:")
    for k in range(4):
        a(f"buffer_load_dwordx4 {vr(KT + 4 * k, 4)}, v5, s[12:15], 0 offen offset:{1024 * k}{LD}")
    a("s_waitcnt vmcnt(0)")
    a(f"{MFMA} {vr(S0, 16)}, {vr(KT, 4)}, {vr(Q, 4)}, 0")
    a(f"{MFMA} {vr(S0, 16)}, {vr(KT + 4, 4)}, {vr(Q + 4, 4)}, {vr(S0, 16)}")
    a("v_add_u32 v5, 4096, v5")
    for r in range(16):
        a(f"v_exp_f32 v{S0 + r}, v{S0 + r}")
    for r in range(8):
        a(f"v_cvt_pk_bf16_f32 v{P0 + r}, v{S0 + 2 * r}, v{S0 + 2 * r + 1}")
    a(f"{MFMA} {vr(O, 16)}, {vr(KT + 8, 4)}, {vr(P0, 4)}, {vr(O, 16)}")
    a(f"{MFMA} {vr(O, 16)}, {vr(KT + 12, 4)}, {vr(P0 + 4, 4)}, {vr(O, 16)}")
    a("s_nop 15")
    a("s_sub_u32 s35, s35, 1")
    a("s_cmp_lg_u32 s35, 0")
    a("s_cbranch_scc1 P2_SLOW2")
    a("s_nop 7")
    a("s_branch P2_FIN")


WO_SZ = 57344
P3_WO = [WO_SZ + 512, 0]
P3_EXCH = 2 * (WO_SZ + 512)
P2_COMBINE_BASE = 0
OREG = 64


def p3_params(a):
    a("s_and_b32 s3, s2, 7")
    a("s_lshr_b32 s24, s2, 3")
    a("s_mul_i32 s25, s24, 37")
    a("s_lshr_b32 s25, s25, 8")
    a("s_mul_i32 s50, s25, 7")
    a("s_sub_u32 s51, s24, s50")
    a("s_lshl_b32 s51, s51, 7")
    a("s_lshl_b32 s3, s3, 2")
    a("s_add_u32 s50, s25, s3")
    a("s_and_b32 s52, s23, 1")
    a("s_lshl_b32 s25, s50, 1")
    a("s_add_u32 s52, s52, s25")
    a("s_lshr_b32 s53, s23, 1")


def p3_wo_dma(a, br):
    a(f"s_load_dwordx2 s[6:7], s[0:1], {16 + 24 * br}")
    a("v_lshrrev_b32 v6, 3, v1")
    a("v_mul_u32_u24 v3, 896, v6")
    a("v_bfe_u32 v7, v1, 4, 1")
    a("v_lshlrev_b32 v7, 2, v7")
    a("v_and_b32 v6, 7, v1")
    a("v_xor_b32 v7, v7, v6")
    a("v_lshl_add_u32 v3, v7, 4, v3")
    a("v_add_u32 v3, s51, v3")
    a(f"v_add_u32 v2, {7168 - 1024}, v3")
    a("s_mul_i32 s24, s23, 14336")
    a("s_lshl_b32 s25, s23, 11")
    a(f"s_add_u32 s25, s25, {P3_WO[br]}")
    a("s_waitcnt lgkmcnt(0)")
    a.dsq = []
    srd(a, 16, 6, 7, 448 * 896)
    for m in range(7):
        a(f"s_add_u32 m0, s25, {8192 * m}")
        a.vm("buffer_load_dwordx4 v3, s[16:19], s24 offen lds", f"wo{br}")
        a.vm("buffer_load_dwordx4 v2, s[16:19], s24 offen offset:1024 lds", f"wo{br}")
        if m < 6:
            a(f"s_add_u32 s24, s24, {64 * 896}")
    a("v_mov_b32 v6, 0")
    a("v_mov_b32 v7, 0")
    a("v_lshlrev_b32 v2, 3, v1")
    a(f"v_add_u32 v2, {P3_WO[br] + WO_SZ}, v2")
    a.ds("ds_write_b64 v2, v[6:7]")


def p3_load_o(a, br):
    a(f"s_add_u32 s27, s52, {64 * br}")
    a("s_lshl_b32 s27, s27, 4")
    a("s_lshl_b32 s28, s53, 3")
    a("s_add_u32 s27, s27, s28")
    if FUSED:
        a("s_lshl_b32 s28, s27, 3")
        a(f"s_add_u32 s28, s28, {FL_O}")
        flag_wait(a, 28, 8)
    a("s_lshl_b32 s27, s27, 11")
    a(f"s_add_u32 s27, s27, {WS_OF}")
    a("v_lshlrev_b32 v4, 4, v1")
    for ks in range(16):
        if ks % 4 == 0 and ks > 0:
            a("s_add_u32 s27, s27, 4096")
        a.vm(f"buffer_load_dwordx4 {vr(OREG + 4 * ks, 4, 'a')}, v4, s[8:11], s27 offen offset:{(ks % 4) * 1024}{LD}", f"o{ks}")


def p3_compute(a, br):
    ACC, WF = 16, 48
    a("v_bfe_u32 v6, v1, 2, 2")
    a("v_lshrrev_b32 v7, 5, v1")
    a("v_lshl_add_u32 v7, v7, 2, v6")
    a("v_lshlrev_b32 v5, 7, v7")
    a("v_bfe_u32 v7, v1, 4, 1")
    a("v_lshl_add_u32 v5, v7, 5, v5")
    a("v_and_b32 v7, 1, v1")
    a("v_lshl_add_u32 v5, v7, 4, v5")
    a("v_bfe_u32 v7, v1, 1, 1")
    a("v_lshl_add_u32 v5, v7, 3, v5")
    a("s_mul_i32 s28, s53, 28672")
    a(f"s_add_u32 s28, s28, {P3_WO[br]}")
    a("v_add_u32 v5, s28, v5")
    a("v_lshrrev_b32 v6, 1, v6")
    a("v_xor_b32 v6, s53, v6")
    a("v_lshl_add_u32 v12, v6, 6, v5")
    a("v_xor_b32 v6, 1, v6")
    a("v_lshl_add_u32 v13, v6, 6, v5")

    def trread(ks, ct):
        hd, f = divmod(ks, 2)
        off = (28 * hd + 16 * f) * 128
        d = WF + 8 * (ks % 2) + 4 * ct
        a.ds(f"ds_read_b64_tr_b16 {vr(d, 2)}, v{12 + ct} offset:{off}", f"w{ks}_{ct}")
        a.ds(f"ds_read_b64_tr_b16 {vr(d + 2, 2)}, v{12 + ct} offset:{off + 1024}", f"w{ks}_{ct}")

    trread(0, 0); trread(0, 1)
    for ks in range(16):
        a.vm_wait(f"o{ks}")
        for ct in range(2):
            a.ds_wait(f"w{ks}_{ct}")
            acc = vr(ACC + 16 * ct, 16)
            c = "0" if ks == 0 else acc
            a(f"{MFMA} {acc}, {vr(WF + 8 * (ks % 2) + 4 * ct, 4)}, {vr(OREG + 4 * ks, 4, 'a')}, {c}")
            if ks < 15:
                trread(ks + 1, ct)
    a("s_xor_b32 s28, s23, 2")
    a("s_lshl_b32 s28, s28, 12")
    a(f"s_add_u32 s28, s28, {P3_EXCH}")
    a("v_add_u32 v6, s28, v4")
    a("s_lshl_b32 s28, s23, 12")
    a(f"s_add_u32 s28, s28, {P3_EXCH}")
    a("v_add_u32 v7, s28, v4")
    a("s_mul_i32 s27, s52, 57344")
    a(f"s_add_u32 s27, s27, {896 * br}")
    a("s_add_u32 s27, s27, s51")
    a("s_lshl_b32 s28, s53, 6")
    a("s_add_u32 s27, s27, s28")
    a("v_and_b32 v8, 31, v1")
    a("v_mul_u32_u24 v8, 1792, v8")
    a("v_lshrrev_b32 v9, 5, v1")
    a("v_lshl_add_u32 v8, v9, 4, v8")
    for k in range(4):
        a(f"ds_write_b128 v6, {vr(ACC + 16 + 4 * k, 4)} offset:{1024 * k}")
    a("s_waitcnt lgkmcnt(0)")
    a("s_barrier")
    for k in range(4):
        a(f"ds_read_b128 {vr(64 + 4 * k, 4)}, v7 offset:{1024 * k}")
    for k in range(4):
        a(f"s_waitcnt lgkmcnt({3 - k})")
        for u in range(2):
            r = 4 * k + 2 * u
            a(f"v_pk_add_f32 {vr(ACC + r, 2)}, {vr(ACC + r, 2)}, {vr(64 + r, 2)}")
    a.dsq = []
    for i in range(8):
        a(f"v_cvt_pk_bf16_f32 v{80 + i}, v{ACC + 2 * i}, v{ACC + 2 * i + 1}")
    a.vm(f"buffer_store_dwordx4 {vr(80, 4)}, v8, s[12:15], s27 offen{OUT_ST}", "out")
    a.vm(f"buffer_store_dwordx4 {vr(84, 4)}, v8, s[12:15], s27 offen offset:32{OUT_ST}", "out")


def out_srd(a):
    a("s_load_dwordx2 s[6:7], s[0:1], 48")
    a("s_waitcnt lgkmcnt(0)")
    a.dsq = []
    srd(a, 12, 6, 7, 2048 * 1792)


def kd(name, nv, acc):
    return f""".p2align 6
.amdhsa_kernel {name}
  .amdhsa_next_free_vgpr {nv}
  .amdhsa_next_free_sgpr 102
  .amdhsa_accum_offset {acc}
  .amdhsa_group_segment_fixed_size 0
  .amdhsa_kernarg_size 72
  .amdhsa_user_sgpr_count 2
  .amdhsa_user_sgpr_kernarg_segment_ptr 1
  .amdhsa_system_sgpr_workgroup_id_x 1
.end_amdhsa_kernel
"""


def k1(a):
    a("k1_kernel:")
    common_prologue(a, 256, "K1_END")
    p1(a)
    if STAMPS:
        a("s_waitcnt vmcnt(0)")
        stamp(a)
    stamp_dump(a, 0)
    a("K1_END:")
    a("s_endpgm")


def k2(a):
    a("k2_kernel:")
    common_prologue(a, 256, "K2_END")
    p2(a)
    if STAMPS:
        a("s_waitcnt vmcnt(0)")
        stamp(a)
    stamp_dump(a, 1)
    a("K2_END:")
    a("s_endpgm")
    p2_slow(a)


def k3(a):
    a("k3_kernel:")
    common_prologue(a, 224, "K3_END")
    p3_params(a)
    a("s_waitcnt lgkmcnt(0)")
    ws_srd(a)
    p3_wo_dma(a, 1)
    p3_load_o(a, 1)
    p3_wo_dma(a, 0)
    out_srd(a)
    stamp(a)
    a.vm_wait("wo1", extra=" lgkmcnt(0)")
    a.vmq = [f"o{k}" for k in range(16)] + ["wo0"] * 14
    a("s_barrier")
    stamp(a)
    p3_compute(a, 1)
    stamp(a)
    p3_load_o(a, 0)
    a.vm_wait("wo0")
    a.vmq = ["out", "out"] + [f"o{k}" for k in range(16)]
    a("s_barrier")
    stamp(a)
    p3_compute(a, 0)
    stamp(a)
    if STAMPS:
        a("s_waitcnt vmcnt(0)")
        stamp(a)
    stamp_dump(a, 2)
    a("K3_END:")
    a("s_endpgm")


def main(out):
    hdr = open(f"cdna_kernels/{NAME}.s.ref").read().split("; Override")[0]
    txt = hdr
    txt += "; @launch kernel=k1_kernel grid=(256,1,1) block=(256,1,1) lds=163840\n"
    txt += "; @launch kernel=k2_kernel grid=(256,1,1) block=(256,1,1) lds=49152\n"
    txt += f"; @launch kernel=k3_kernel grid=(224,1,1) block=(256,1,1) lds={P3_EXCH + 16384}\n"
    txt += '.amdgcn_target "amdgcn-amd-amdhsa--gfx950"\n.text\n'
    for nm, fn in (("k1_kernel", k1), ("k2_kernel", k2), ("k3_kernel", k3)):
        a = Asm()
        fn(a)
        txt += f".globl {nm}\n.p2align 8\n.type {nm},@function\n" + a.text()
        print(nm, "instrs:", len(a.items), "auto nops:", a.nops_inserted, file=sys.stderr)
        if "-v" in sys.argv:
            for l in a.log:
                print("   ", l, file=sys.stderr)
    txt += '.section .rodata,"a"\n'
    txt += kd("k1_kernel", 368, 256) + kd("k2_kernel", 224, 160) + kd("k3_kernel", 224, 96)
    open(out, "w").write(txt)


if __name__ == "__main__":
    if "--stamps" in sys.argv:
        STAMPS = True
        sys.argv.remove("--stamps")
    args = [x for x in sys.argv[1:] if not x.startswith("-")]
    main(args[0] if args else f"cdna_kernels/{NAME}.s")
```

```python
import sys, math, struct
sys.path.insert(0, "gen")
from asmlib import Asm

NAME = "concat_heads__softmax_full_mha__sliding_local_dilated__prompt"
WS_QF = 0
WS_KV = 4 << 20
WS_OF = 12 << 20
WS_FL = 16 << 20
FL_KV = WS_FL
FL_Q = WS_FL + 4096
FL_O = WS_FL + 8192
WS_DBG = 20 << 20
WS_BYTES = 32 << 20
CSCALE = (28 ** -0.5) * math.log2(math.e)
M_OFFSET = 32.0
STAMPS = False
RT = False
FUSED = True
ST = " sc1"
LD = " sc1"
LDKV = " sc1"
OUT_ST = ""
OUTB_ST = " sc1"
PREFETCH = True
WO_BATCH = 4
WBIAS = 4096
MFMA = "v_mfma_f32_32x32x16_bf16"
WO_SZ = 57344
P3_WO = [WO_SZ, 0]
P3_EXCH = 2 * WO_SZ
P2_CB = 2 * WO_SZ
SPIN_LIMIT = 1 << 22


def f32(x):
    return "0x%08x" % struct.unpack("<I", struct.pack("<f", x))[0]


def vr(b, n, k="v"):
    return f"{k}[{b}:{b + n - 1}]"


def srd(a, d, lo, hi, nbytes):
    a(f"s_mov_b32 s{d}, s{lo}")
    a(f"s_and_b32 s{d + 1}, s{hi}, 0xffff")
    a(f"s_mov_b32 s{d + 2}, {nbytes}")
    a(f"s_mov_b32 s{d + 3}, 0x20000")


_stamp_n = [0]


def stamp(a, idx):
    if STAMPS:
        if idx == 0:
            a("s_memrealtime s[98:99]")
            a("s_waitcnt lgkmcnt(0)")
            a("s_mov_b32 s79, s98")
        a("s_memrealtime s[98:99]" if RT else "s_memtime s[98:99]")
        a("s_waitcnt lgkmcnt(0)")
        a(f"s_mov_b32 s{64 + idx}, s98")


def stamp_dump(a, kidx, n=15):
    if not STAMPS:
        return
    a("s_memrealtime s[98:99]")
    a("s_waitcnt lgkmcnt(0)")
    a("s_lshl_b32 s3, s2, 3")
    a("s_add_u32 s3, s3, s23")
    a("s_lshl_b32 s3, s3, 7")
    a(f"s_add_u32 s3, s3, {WS_DBG + kidx * 524288}")
    a("s_add_u32 s100, s4, s3")
    a("s_addc_u32 s101, s5, 0")
    a("v_mov_b32 v0, 0")
    for i in range(n):
        a(f"v_mov_b32 v1, s{64 + i}")
        a(f"global_store_dword v0, v1, s[100:101] offset:{4 * i}")
    a("v_mov_b32 v1, s79")
    a(f"global_store_dword v0, v1, s[100:101] offset:{4 * 30}")
    a("v_mov_b32 v1, s98")
    a(f"global_store_dword v0, v1, s[100:101] offset:{4 * 31}")


def exec_set(a, lo, hi):
    a(f"s_mov_b32 exec_lo, {lo}")
    a(f"s_mov_b32 exec_hi, {hi}")


def exec_full(a):
    a("s_mov_b64 exec, -1")


def split_negm(a, x, t1, t2, q6, q7, sperm):
    a(f"v_and_b32 v{t1}, 0xffff0000, v{x}")
    a(f"v_sub_f32 v{x}, v{x}, v{t1}")
    a(f"v_and_b32 v{t2}, 0xffff0000, v{x}")
    a(f"v_sub_f32 v{x}, v{x}, v{t2}")
    exec_set(a, 0, -1)
    a(f"v_perm_b32 v{q6}, v{t2}, v{t1}, s{sperm}")
    a(f"v_lshrrev_b32 v{q7}, 16, v{x}")
    exec_full(a)


def max16(a, dst, S, n=16, init=None):
    regs = [S + i for i in range(n)]
    if init is None:
        a(f"v_max3_f32 v{dst}, v{regs[0]}, v{regs[1]}, v{regs[2]}")
        regs = regs[3:]
    while len(regs) >= 2:
        a(f"v_max3_f32 v{dst}, v{dst}, v{regs[0]}, v{regs[1]}")
        regs = regs[2:]
    if regs:
        a(f"v_max_f32 v{dst}, v{dst}, v{regs[0]}")


def xhalf_max(a, m, t):
    a(f"v_mov_b32 v{t}, v{m}")
    a(f"v_permlane32_swap_b32 v{m}, v{t}")
    a(f"v_max_f32 v{m}, v{m}, v{t}")


KA = 80


def common_prologue(a, nwg, end):
    a(f"s_cmp_ge_u32 s2, {nwg}")
    a(f"s_cbranch_scc1 {end}")
    a("s_load_dwordx16 s[80:95], s[0:1], 0")
    a("s_load_dwordx2 s[96:97], s[0:1], 64")
    if STAMPS:
        for i in range(15):
            a(f"s_mov_b32 s{64 + i}, 0")
    a("v_lshrrev_b32 v2, 6, v0")
    a("v_and_b32 v1, 63, v0")
    a("v_readfirstlane_b32 s23, v2")
    a("s_mov_b64 s[60:61], 0")
    a("s_and_b32 s62, s23, 3")


def ws_srd(a):
    a("s_mov_b64 s[4:5], s[96:97]")
    srd(a, 8, 96, 97, WS_BYTES)


def xw_srds(a):
    a("s_cmp_eq_u32 s20, 0")
    a("s_cselect_b32 s6, s80, s86")
    a("s_cselect_b32 s7, s81, s87")
    a("s_cselect_b32 s28, s82, s88")
    a("s_cselect_b32 s29, s83, s89")
    srd(a, 12, 6, 7, 2048 * 896)
    a(f"s_sub_u32 s28, s28, {WBIAS}")
    a("s_subb_u32 s29, s29, 0")
    srd(a, 16, 28, 29, 448 * 2688 + WBIAS)


def band_masks():
    own, prev = [], []
    for r in range(16):
        mo = mp = 0
        for lane in range(64):
            q, h = lane % 32, lane // 32
            key = 8 * (r // 4) + 4 * h + r % 4
            d = q - key
            if 0 <= d <= 14 and d % 2 == 0:
                mo |= 1 << lane
            d = q + 32 - key
            if 0 <= d <= 14 and d % 2 == 0:
                mp |= 1 << lane
        own.append(mo); prev.append(mp)
    return own, prev


_lbl = [0]
TG = [124]


def tag_issue(a):
    if not FUSED:
        return
    T = TG[0]
    a(f"v_mov_b32 v{T + 2}, 0")
    a.vm(f"global_load_dwordx2 {vr(T, 2)}, v{T + 2}, s[94:95] sc1", "tag")


def spin_guard(a):
    a("s_add_u32 s63, s63, 1")
    a(f"s_cmp_gt_u32 s63, {SPIN_LIMIT}")
    a("s_cbranch_scc1 KERNEL_END")


def tag_get(a):
    if not FUSED:
        return
    T = TG[0]
    n = _lbl[0]; _lbl[0] += 1
    a("s_mov_b32 s63, 0")
    a(f"TAG_L{n}:")
    a("s_waitcnt vmcnt(0)")
    a.vmq = []
    a(f"v_readfirstlane_b32 s60, v{T}")
    a(f"v_readfirstlane_b32 s61, v{T + 1}")
    a("s_nop 1")
    a("s_cmp_lg_u32 s60, 0")
    a(f"s_cbranch_scc1 TAG_OK{n}")
    spin_guard(a)
    a(f"global_load_dwordx2 {vr(T, 2)}, v{T + 2}, s[94:95] sc1")
    a(f"s_branch TAG_L{n}")
    a(f"TAG_OK{n}:")


def flag_store(a, soff, nflags=1):
    if not FUSED:
        return
    T = TG[0]
    a(f"v_mov_b32 v{T}, s60")
    a(f"v_mov_b32 v{T + 1}, s61")
    a(f"v_lshlrev_b32 v{T + 2}, 3, v1")
    exec_set(a, (1 << nflags) - 1, 0)
    a.vm(f"buffer_store_dwordx2 {vr(T, 2)}, v{T + 2}, s[8:11], s{soff} offen sc1", "fl")
    exec_full(a)


def flag_poll_issue(a, soff, n):
    T = TG[0]
    a(f"v_and_b32 v{T + 2}, {n - 1}, v1")
    a(f"v_lshlrev_b32 v{T + 2}, 3, v{T + 2}")
    a.vm(f"buffer_load_dwordx2 {vr(T, 2)}, v{T + 2}, s[8:11], s{soff} offen sc1", "poll")


def flag_poll_finish(a, soff, sleep=0):
    T = TG[0]
    k = _lbl[0]; _lbl[0] += 1
    a("s_mov_b32 s63, 0")
    a(f"POLL{k}:")
    a("s_waitcnt vmcnt(0)")
    a(f"v_cmp_ne_u64 vcc, s[60:61], {vr(T, 2)}")
    a("s_nop 1")
    a(f"s_cbranch_vccz POLL_OK{k}")
    spin_guard(a)
    if sleep:
        a(f"s_sleep {sleep}")
    a(f"buffer_load_dwordx2 {vr(T, 2)}, v{T + 2}, s[8:11], s{soff} offen sc1")
    a(f"s_branch POLL{k}")
    a(f"POLL_OK{k}:")
    a.vmq = []


def flag_wait(a, soff, n, sleep=0):
    if not FUSED:
        return
    flag_poll_issue(a, soff, n)
    flag_poll_finish(a, soff, sleep)


def p1_decode(a):
    a("s_and_b32 s3, s2, 7")
    a("s_lshr_b32 s24, s2, 3")
    a("s_lshr_b32 s20, s3, 2")
    a("s_and_b32 s25, s3, 3")
    a("s_and_b32 s27, s3, 1")
    a("s_lshl_b32 s27, s27, 3")
    a("s_and_b32 s21, s24, 7")
    a("s_add_u32 s21, s21, s27")
    a("s_lshr_b32 s27, s25, 1")
    a("s_lshl_b32 s27, s27, 2")
    a("s_lshr_b32 s22, s24, 3")
    a("s_add_u32 s22, s22, s27")
    a("s_lshl_b32 s26, s21, 2")
    a("s_add_u32 s26, s26, s62")


PFX, PFW = 126, 127


def p1_prefetch_setup(a):
    a("s_and_b32 s27, s25, 1")
    a("s_lshl_b32 s27, s27, 5")
    a("s_add_u32 s27, s27, s24")
    a("s_mul_i32 s27, s27, 28672")
    a("v_mul_u32_u24 v20, 896, v1")
    a("v_add_u32 v20, s27, v20")
    a("v_mul_u32_u24 v10, 43, v1")
    a("v_lshrrev_b32 v10, 9, v10")
    a("v_mul_u32_u24 v11, 12, v10")
    a("v_sub_u32 v11, v1, v11")
    a("s_lshl_b32 s27, s24, 1")
    a("v_add_u32 v10, s27, v10")
    a("s_movk_i32 s27, 2688")
    a("v_mul_lo_u32 v21, v10, s27")
    a("v_lshrrev_b32 v10, 2, v11")
    a("v_mul_u32_u24 v10, 896, v10")
    a("v_and_b32 v11, 3, v11")
    a("v_lshl_add_u32 v10, v11, 7, v10")
    a("s_lshr_b32 s27, s25, 1")
    a("s_mul_i32 s27, s27, 384")
    a(f"s_add_u32 s27, s27, {WBIAS}")
    a("v_add3_u32 v21, v21, v10, s27")
    a("s_waitcnt lgkmcnt(0)")
    xw_srds(a)
    ws_srd(a)


def p1_prefetch(a, c, wave, vx, vw):
    if not PREFETCH:
        return
    n = _lbl[0]; _lbl[0] += 1
    a(f"s_cmp_lg_u32 s62, {wave}")
    a(f"s_cbranch_scc1 PF_SKIP{n}")
    a(f"s_mov_b32 s3, {172032 * c}")
    a("s_mov_b32 exec_hi, 0")
    a(f"buffer_load_dword v143, v{vx}, s[12:15], 0 offen offset:{128 * c}")
    a("s_mov_b32 exec_lo, 0xffffff")
    a(f"buffer_load_dword v143, v{vw}, s[16:19], s3 offen")
    exec_full(a)
    a(f"PF_SKIP{n}:")


PF_PLAN = {-1: [(0, 3), (1, 0), (2, 1), (3, 2)], 0: [(4, 3), (5, 0), (6, 1)]}


def p1_loader(a):
    TG[0] = 24
    a("s_mul_i32 s35, s26, 28672")
    a("s_mul_i32 s36, s62, 43008")
    a("v_lshrrev_b32 v2, 3, v1")
    a("v_lshrrev_b32 v3, 4, v1")
    a("v_and_b32 v8, 7, v1")
    a("v_xor_b32 v3, v3, v8")
    a("v_mul_u32_u24 v9, 896, v2")
    a("v_lshl_add_u32 v4, v3, 4, v9")
    a("v_xor_b32 v3, 4, v3")
    a("v_lshl_add_u32 v5, v3, 4, v9")
    a("v_add_u32 v5, 6144, v5")
    a("v_add_u32 v6, 12288, v4")
    a("v_add_u32 v7, 12288, v5")
    a("s_mul_i32 s27, s22, 112")
    a(f"s_add_u32 s27, s27, {WBIAS}")
    a("v_mul_u32_u24 v8, 2688, v2")
    a("v_bfe_u32 v2, v1, 2, 1")
    a("v_bfe_u32 v3, v1, 4, 1")
    a("v_xor_b32 v2, v2, v3")
    a("v_mul_u32_u24 v2, 48, v2")
    a("v_and_b32 v3, 3, v1")
    a("v_lshl_add_u32 v2, v3, 4, v2")
    a("v_add3_u32 v8, v8, v2, s27")

    def ready():
        a("s_waitcnt lgkmcnt(0)")
        xw_srds(a)

    def tag_publish():
        n = _lbl[0]; _lbl[0] += 1
        ws_srd(a)
        a("s_or_b32 s3, s2, s62")
        a("s_cmp_lg_u32 s3, 0")
        a(f"s_cbranch_scc1 NO_TAG_PUB{n}")
        a("s_memrealtime s[98:99]")
        a("s_waitcnt lgkmcnt(0)")
        a("s_or_b32 s98, s98, 1")
        a("v_mov_b32 v24, s98")
        a("v_mov_b32 v25, s99")
        a("v_mov_b32 v26, 0")
        exec_set(a, 1, 0)
        a("global_store_dwordx2 v26, v[24:25], s[94:95] sc1")
        exec_full(a)
        a(f"NO_TAG_PUB{n}:")

    a("s_lshl_b32 s37, s62, 12")
    a("s_cmp_lg_u32 s20, 0")
    a("s_cbranch_scc1 P1LB")
    SL = 32768
    VW = 10
    a(f"v_add_u32 v{VW}, 896, v8")
    a(f"v_add_u32 v{VW + 1}, {1792 - 1024}, v8")
    a(f"v_add_u32 v{VW + 2}, {896 + 21504 - 2048}, v8")
    a(f"v_add_u32 v{VW + 3}, {1792 + 21504 - 3072}, v8")
    a(f"v_add_u32 v{VW + 4}, {21504 - 2048}, v8")

    def itemA(n):
        slot = n % 4
        if n < 7:
            a(f"s_add_u32 m0, s37, {slot * SL}")
            a(f"s_add_u32 s27, s35, {128 * n}")
            for q in range(4):
                a.vm(f"buffer_load_dwordx4 v{4 + q}, s[12:15], s27 offen offset:{1024 * q} lds", f"i{n}")
            a(f"s_add_u32 m0, s37, {slot * SL + 16384}")
            a(f"s_add_u32 s27, s36, {172032 * n}")
            for j in range(4):
                a.vm(f"buffer_load_dwordx4 v{VW + j}, s[16:19], s27 offen offset:{1024 * j} lds", f"i{n}")
        else:
            for u in range(4):
                c = 4 * (n - 7) + u
                if c > 6:
                    continue
                a(f"s_add_u32 m0, s37, {slot * SL + (u // 2) * 16384 + (u % 2) * 1024}")
                a(f"s_add_u32 s27, s36, {172032 * c}")
                a.vm(f"buffer_load_dwordx4 v8, s[16:19], s27 offen lds", f"i{n}")
                a.vm(f"buffer_load_dwordx4 v{VW + 4}, s[16:19], s27 offen offset:2048 lds", f"i{n}")

    ready()
    tag_publish()
    itemA(0); itemA(1)
    for n in range(9):
        a.vm_wait(f"i{n}")
        a("s_barrier")
        if n + 2 <= 8:
            itemA(n + 2)
        if n == 6:
            tag_issue(a)
    a("s_branch P1L_DONE")
    a("P1LB:")
    a.vmq = []
    XS, WR, WSL = 20480, 61440, 24576
    VH = 16
    a("s_mul_i32 s38, s62, 6144")
    a(f"s_add_u32 s38, s38, {WR}")
    a("s_lshl_b32 s39, s62, 9")
    a(f"s_add_u32 s39, s39, {16384 + 2048}")
    a("s_lshl_b32 s54, s21, 7")
    a("s_sub_u32 s54, s54, 16")
    a("s_max_i32 s54, s54, 0")
    a("s_lshl_b32 s55, s62, 2")
    a("s_add_u32 s54, s54, s55")
    a("s_mul_i32 s54, s54, 896")
    a("s_lshl_b32 s55, s62, 1")
    a("v_lshrrev_b32 v2, 3, v1")
    a("v_lshrrev_b32 v3, 4, v1")
    a("v_add_u32 v3, s55, v3")
    a("v_and_b32 v9, 7, v1")
    a("v_xor_b32 v3, v3, v9")
    a("v_and_b32 v3, 7, v3")
    a("v_mul_u32_u24 v2, 896, v2")
    a(f"v_lshl_add_u32 v{VH}, v3, 4, v2")
    for rg in range(2):
        for j in range(3):
            a(f"v_add_u32 v{VW + 3 * rg + j}, {((896 - 1024) * j + 21504 * rg) & 0xffffffff}, v8")

    def itemB(i):
        slot = i % 3
        a(f"s_add_u32 m0, s37, {slot * XS}")
        a(f"s_add_u32 s27, s35, {128 * i}")
        for q in range(4):
            a.vm(f"buffer_load_dwordx4 v{4 + q}, s[12:15], s27 offen offset:{1024 * q} lds", f"i{i}")
        a(f"s_add_u32 m0, s39, {slot * XS}")
        a(f"s_add_u32 s27, s54, {128 * i}")
        a("s_mov_b32 exec_hi, 0")
        a.vm(f"buffer_load_dwordx4 v{VH}, s[12:15], s27 offen lds", f"i{i}")
        a("s_mov_b32 exec_hi, -1")
        a(f"s_add_u32 s27, s36, {172032 * i}")
        for rg in range(2):
            a(f"s_add_u32 m0, s38, {slot * WSL + 3072 * rg}")
            for j in range(3):
                a.vm(f"buffer_load_dwordx4 v{VW + 3 * rg + j}, s[16:19], s27 offen offset:{1024 * j} lds", f"i{i}")

    ready()
    tag_publish()
    itemB(0); itemB(1)
    for n in range(7):
        a.vm_wait(f"i{n}")
        a("s_barrier")
        if n + 2 <= 6:
            itemB(n + 2)
        if n == 4:
            tag_issue(a)
    a("s_barrier")
    a("P1L_DONE:")
    a.vmq = []
    a("s_barrier")
    tag_get(a)


def xread_bases(a, d, sbase):
    a("v_and_b32 v2, 31, v1")
    a("v_bfe_u32 v3, v1, 1, 3")
    a(f"v_lshrrev_b32 v{d}, 5, v1")
    a(f"v_xor_b32 v3, v3, v{d}")
    a("v_lshlrev_b32 v2, 7, v2")
    a(f"v_add_u32 v2, {sbase}, v2")
    for s4 in range(4):
        a(f"v_xor_b32 v{d + s4}, {2 * s4}, v3")
        a(f"v_lshl_add_u32 v{d + s4}, v{d + s4}, 4, v2")


def wread_bases(a, d, base, hstride):
    a("v_lshrrev_b32 v2, 5, v1")
    a(f"v_mul_u32_u24 v2, {hstride}, v2")
    a("v_bfe_u32 v3, v1, 2, 2")
    a("v_lshl_add_u32 v2, v3, 7, v2")
    a("v_bfe_u32 v3, v1, 4, 1")
    a("v_lshl_add_u32 v2, v3, 5, v2")
    a("v_and_b32 v3, 3, v1")
    a("v_lshl_add_u32 v2, v3, 3, v2")
    a(f"v_add_u32 v2, {base}, v2")
    a("v_bfe_u32 v3, v1, 3, 1")
    a(f"v_lshl_add_u32 v{d}, v3, 6, v2")
    a("v_xor_b32 v3, 1, v3")
    a(f"v_lshl_add_u32 v{d + 1}, v3, 6, v2")
    a(f"v_add_u32 v{d + 1}, 8, v{d + 1}")


def vpad_reg(a, d):
    a("v_and_b32 v2, 31, v1")
    a(f"v_mov_b32 v{d}, 0")
    a("v_mov_b32 v3, 0x3f803f80")
    a("v_cmp_eq_u32 vcc, 28, v2")
    a(f"v_cndmask_b32 v{d}, v{d}, v3, vcc")


NV_ARCH = 144


QX = 131072


def p1a(a):
    TG[0] = 124
    SL = 32768
    WF = 80
    XB = 4
    WB = 12
    KP = 128
    L16 = 2
    a("s_lshl_b32 s37, s62, 12")
    xread_bases(a, XB, "s37")
    wread_bases(a, WB, 0, 2048)
    for j in range(4):
        a(f"v_add_u32 v{XB + 4 + j}, {2 * SL}, v{XB + j}")
    for j in range(2):
        a(f"v_add_u32 v{WB + 2 + j}, {2 * SL}, v{WB + j}")
    a("v_mov_b32 v140, v20")
    a("v_mov_b32 v141, v21")
    accreg = [16, 32, 48, 64, 48, 64]
    seq = [(n, n, s4, t) for n in range(7) for s4 in range(4) for t in range(4)]
    seq += [(7 + c // 4, c, s4, t) for t in (5, 4) for c in range(7) for s4 in range(4)]
    done_b = set()

    def reads(e):
        n, c, s4, t = seq[e]
        if n not in done_b:
            done_b.add(n)
            a("s_barrier")
            if n == 0:
                stamp(a, 1)
            for c_, w_ in PF_PLAN.get(n, []):
                p1_prefetch(a, c_, w_, 140, 141)
        slot = n % 4
        k = 4 * c + s4
        if t == 0:
            a.ds(f"ds_read_b128 {vr(4 * k, 4, 'a')}, v{XB + 4 * (slot // 2) + s4} offset:{(slot % 2) * SL}", f"e{e}")
        hh = t % 2
        if n < 7:
            off = 16384 + s4 * 4096 + (t // 2) * 1024
        else:
            u = c % 4
            off = (u // 2) * 16384 + s4 * 4096 + (u % 2) * 1024
        off += (slot % 2) * SL
        d = WF + 4 * (e % 11)
        b = WB + 2 * (slot // 2) + hh
        a.ds(f"ds_read_b64_tr_b16 {vr(d, 2)}, v{b} offset:{off}", f"e{e}")
        a.ds(f"ds_read_b64_tr_b16 {vr(d + 2, 2)}, v{b} offset:{off + 512}", f"e{e}")

    def kv_epilogue():
        a("s_waitcnt vmcnt(0)")
        a.vmq = []
        vpad_reg(a, 4)
        a(f"v_lshlrev_b32 v{L16}, 4, v1")
        a("s_lshl_b32 s27, s22, 7")
        a("s_add_u32 s27, s27, s26")
        a("s_lshl_b32 s29, s27, 12")
        a(f"s_add_u32 s29, s29, {WS_KV}")
        a(f"s_add_u32 s30, s29, {64 * 4096}")
        for hh in range(2):
            AK, AV = 16 + 16 * hh, 48 + 16 * hh
            kp = KP + 8 * hh
            vp = 16 + 8 * hh
            so = 29 + hh
            for i in range(8):
                a(f"v_cvt_pk_bf16_f32 v{kp + i}, v{AK + 2 * i}, v{AK + 2 * i + 1}")
            exec_set(a, 0, -1)
            a(f"v_mov_b32 v{kp + 6}, 0x3f803f80")
            a(f"v_mov_b32 v{kp + 7}, 0x3f80")
            exec_full(a)
            a.vm(f"buffer_store_dwordx4 {vr(kp, 4)}, v{L16}, s[8:11], s{so} offen{ST}", "kv")
            a.vm(f"buffer_store_dwordx4 {vr(kp + 4, 4)}, v{L16}, s[8:11], s{so} offen offset:1024{ST}", "kv")
            for i in range(8):
                a(f"v_cvt_pk_bf16_f32 v{vp + i}, v{AV + 2 * i}, v{AV + 2 * i + 1}")
            exec_set(a, "0xf0000000", "0xf0000000")
            for i in range(8):
                a(f"v_mov_b32 v{vp + i}, v4")
            exec_full(a)
            a.vm(f"buffer_store_dwordx4 {vr(vp, 4)}, v{L16}, s[8:11], s{so} offen offset:2048{ST}", "kv")
            a.vm(f"buffer_store_dwordx4 {vr(vp + 4, 4)}, v{L16}, s[8:11], s{so} offen offset:3072{ST}", "kv")
        a(f"s_mov_b32 s36, {f32(CSCALE)}")
        a(f"s_mov_b32 s37, {f32(CSCALE)}")
        a("s_mov_b32 s38, 0x07060302")
        a("s_lshl_b32 s28, s27, 11")
        a(f"s_add_u32 s28, s28, {64 * 2048}")
        a("s_lshl_b32 s31, s22, 6")
        a("s_add_u32 s31, s31, s26")
        a("s_lshl_b32 s31, s31, 3")
        a(f"s_add_u32 s31, s31, {FL_KV}")
        a("s_lshl_b32 s33, s62, 11")
        a(f"s_add_u32 s33, s33, {QX}")
        a(f"v_add_u32 v5, s33, v{L16}")

    def q_epilogue(hh):
        AQ = 48 + 16 * hh
        qp, kp, sd = 16 + 8 * hh, KP + 8 * hh, 32
        g = []
        for i in range(0, 8, 2):
            g.append([f"v_pk_mul_f32 {vr(AQ + 2 * j, 2)}, {vr(AQ + 2 * j, 2)}, s[36:37]" for j in (i, i + 1)])
        for i in range(0, 8, 2):
            g.append([f"v_cvt_pk_bf16_f32 v{qp + j}, v{AQ + 2 * j}, v{AQ + 2 * j + 1}" for j in (i, i + 1)])
        g.append(["s_mov_b32 exec_lo, 0", f"v_mov_b32 v{qp + 6}, 0", f"v_mov_b32 v{qp + 7}, 0", "s_mov_b32 exec_lo, -1"])
        g.append([f"{MFMA} {vr(sd, 16)}, {vr(kp, 4)}, {vr(qp, 4)}, 0"])
        g.append([f"{MFMA} {vr(sd, 16)}, {vr(kp + 4, 4)}, {vr(qp + 4, 4)}, {vr(sd, 16)}"])
        if hh == 1:
            g.append([("vm", f"buffer_store_dwordx4 {vr(qp, 4)}, v{L16}, s[8:11], s28 offen{ST}")])
        else:
            g.append([("ds", f"ds_write_b128 v5, {vr(qp, 4)}")])
        g.append([])
        g.append([])
        g.append([f"v_max3_f32 v6, v{sd}, v{sd + 1}, v{sd + 2}", f"v_max3_f32 v6, v6, v{sd + 3}, v{sd + 4}",
                  f"v_max3_f32 v6, v6, v{sd + 5}, v{sd + 6}", f"v_max3_f32 v6, v6, v{sd + 7}, v{sd + 8}"])
        g.append([f"v_max3_f32 v6, v6, v{sd + 9}, v{sd + 10}", f"v_max3_f32 v6, v6, v{sd + 11}, v{sd + 12}",
                  f"v_max3_f32 v6, v6, v{sd + 13}, v{sd + 14}", f"v_max_f32 v6, v6, v{sd + 15}"])
        g.append(["v_mov_b32 v7, v6"])
        g.append(["v_permlane32_swap_b32 v6, v7", "v_max_f32 v6, v6, v7", f"v_sub_f32 v6, {f32(-M_OFFSET)}, v6"])
        g.append(["v_and_b32 v7, 0xffff0000, v6", "v_sub_f32 v6, v6, v7", "v_and_b32 v8, 0xffff0000, v6", "v_sub_f32 v6, v6, v8"])
        g.append(["s_mov_b32 exec_lo, 0", f"v_perm_b32 v{qp + 6}, v8, v7, s38", f"v_lshrrev_b32 v{qp + 7}, 16, v6", "s_mov_b32 exec_lo, -1"])
        if hh == 1:
            g.append([("vm", f"buffer_store_dwordx4 {vr(qp + 4, 4)}, v{L16}, s[8:11], s28 offen offset:1024{ST}")])
        else:
            g.append([("ds", f"ds_write_b128 v5, {vr(qp + 4, 4)} offset:1024")])
        return g

    def emit_group(g):
        for x in g:
            if isinstance(x, tuple):
                (a.vm if x[0] == "vm" else a.ds)(x[1], "q")
            else:
                a(x)

    AHEAD = 8
    rd = 0
    for _ in range(AHEAD):
        reads(rd); rd += 1
    qe1 = q_epilogue(1)
    for e, (n, c, s4, t) in enumerate(seq):
        a.ds_wait(f"e{e}")
        w = vr(WF + 4 * (e % 11), 4)
        x = vr(4 * (4 * c + s4), 4, "a")
        acc = vr(accreg[t], 16)
        cc = "0" if (c == 0 and s4 == 0) else acc
        if t in (2, 3):
            a(f"{MFMA} {acc}, {x}, {w}, {cc}")
        else:
            a(f"{MFMA} {acc}, {w}, {x}, {cc}")
        if rd < len(seq):
            reads(rd); rd += 1
        if e == 80:
            tag_issue(a)
        if e == 111:
            stamp(a, 2)
            kv_epilogue()
            stamp(a, 3)
        if e == 139:
            tag_get(a)
            flag_store(a, 31)
            stamp(a, 4)
        if e >= 143 and qe1:
            emit_group(qe1.pop(0))
        if e == len(seq) - 3:
            a.ds_drain()
            a("s_barrier")
    assert not qe1
    for g in q_epilogue(0):
        emit_group(g)
    stamp(a, 5)
    a(f"s_add_u32 s31, s31, {FL_Q - FL_KV}")
    a("s_waitcnt vmcnt(0) lgkmcnt(0)")
    a.vmq = []; a.dsq = []
    flag_store(a, 31)
    stamp(a, 6)


def finalize_full(a, O, T, soff, l16, t1, t2, off=0):
    a(f"v_mov_b32 v{t1}, v{O + 12}")
    a(f"v_mov_b32 v{t2}, v{O + 12}")
    a(f"v_permlane32_swap_b32 v{t1}, v{t2}")
    a(f"v_rcp_f32 v{t2}, v{t2}")
    a(f"s_nop 0")
    for i in range(8):
        a(f"v_pk_mul_f32 {vr(O + 2 * i, 2)}, {vr(O + 2 * i, 2)}, {vr(t2, 2)} op_sel_hi:[1,0]")
    for i in range(8):
        a(f"v_cvt_pk_bf16_f32 v{T + i}, v{O + 2 * i}, v{O + 2 * i + 1}")
    exec_set(a, 0, -1)
    a(f"v_mov_b32 v{T + 6}, 0")
    a(f"v_mov_b32 v{T + 7}, 0")
    exec_full(a)
    a.vm(f"buffer_store_dwordx4 {vr(T, 4)}, v{l16}, s[8:11], s{soff} offen offset:{off}{ST}", "st")
    a.vm(f"buffer_store_dwordx4 {vr(T + 4, 4)}, v{l16}, s[8:11], s{soff} offen offset:{off + 1024}{ST}", "st")


def p1b(a):
    TG[0] = 140
    XS, WR, WSL = 20480, 61440, 24576
    ACC = 16
    WF = 0
    XF = 56
    XB = 4
    WB = 8
    BA = 72
    a("s_lshl_b32 s37, s62, 12")
    xread_bases(a, XB, "s37")
    wread_bases(a, WB, WR, 3072)
    a("s_and_b32 s55, s62, 1")
    a("s_cmp_eq_u32 s55, 1")
    a("s_cselect_b64 s[56:57], -1, 0")
    a(f"v_cndmask_b32 v{WB + 2}, v{WB}, v{WB + 1}, s[56:57]")
    a("s_lshr_b32 s55, s62, 1")
    a("s_add_u32 s55, s55, 1")
    a("s_lshl_b32 s55, s55, 10")
    a(f"v_add_u32 v{WB + 2}, s55, v{WB + 2}")
    for j in range(3):
        a(f"v_add_u32 v{WB + 3 + j}, {2 * WSL}, v{WB + j}")
    a("s_sub_u32 s55, 16384, s37")
    own, prev = band_masks()
    a("s_cmp_eq_u32 s26, 0")
    a("s_cselect_b64 s[58:59], 0, -1")
    a(f"v_mov_b32 v2, {f32(-1e30)}")
    a("v_mov_b32 v3, 0")
    for r in range(24):
        m = own[r] if r < 16 else prev[r - 8]
        a(f"s_mov_b32 s56, 0x{m & 0xffffffff:x}")
        a(f"s_mov_b32 s57, 0x{m >> 32:x}")
        if r >= 16:
            a("s_and_b64 s[56:57], s[56:57], s[58:59]")
        a(f"v_cndmask_b32 v{14 + r % 2}, v2, v3, s[56:57]")
        a(f"v_accvgpr_write_b32 a{BA + r}, v{14 + r % 2}")

    def reads(k, part):
        c, s4 = divmod(k, 4)
        slot = c % 3
        buf = k % 2
        if part == 0:
            a.ds(f"ds_read_b128 {vr(XF + 8 * buf, 4, 'a')}, v{XB + s4} offset:{slot * XS}", f"x{k}")
        if part == 5:
            a(f"v_add_u32 v{14 + buf}, s55, v{XB + s4}")
        if part == 6:
            a.ds(f"ds_read_b128 {vr(XF + 8 * buf + 4, 4, 'a')}, v{14 + buf} offset:{slot * XS}", f"w{k}_6")
        hh, sec = (divmod(part, 3) if part < 6 else (2, 0))
        b = WB + hh + (3 if slot == 2 else 0)
        off = (slot % 2) * WSL + s4 * 6144 + sec * 1024
        d = WF + 28 * buf + 4 * part
        a.ds(f"ds_read_b64_tr_b16 {vr(d, 2, 'a')}, v{b} offset:{off}", f"w{k}_{part}")
        a.ds(f"ds_read_b64_tr_b16 {vr(d + 2, 2, 'a')}, v{b} offset:{off + 512}", f"w{k}_{part}")

    a("v_mov_b32 v138, v20")
    a("v_mov_b32 v139, v21")
    a("s_barrier")
    stamp(a, 1)
    for c_, w_ in PF_PLAN.get(0, []):
        p1_prefetch(a, c_, w_, 138, 139)
    for part in range(7):
        reads(0, part)
    for k in range(28):
        c, s4 = divmod(k, 4)
        buf = k % 2
        for part in range(7):
            a.ds_wait(f"x{k}", f"w{k}_{part}")
            w = vr(WF + 28 * buf + 4 * part, 4, "a")
            x = vr(XF + 8 * buf + (4 if part == 6 else 0), 4, "a")
            acc = vr(ACC + 16 * part, 16)
            cc = "0" if k == 0 else acc
            if part in (2, 5):
                a(f"{MFMA} {acc}, {x}, {w}, {cc}")
            else:
                a(f"{MFMA} {acc}, {w}, {x}, {cc}")
            if k < 27:
                reads(k + 1, part)
        if s4 == 2 and c < 6:
            a.ds_drain()
            a("s_barrier")
            for c_, w_ in PF_PLAN.get(c + 1, []):
                p1_prefetch(a, c_, w_, 138, 139)
            if c == 4:
                tag_issue(a)
    stamp(a, 2)
    QP = [16, 40]; KP = [24, 48]; VP = [32, 56]; HP = 64
    BO, BP, SO, SP, PP = 72, 80, 96, 112, 128
    PK = [0, 8]; PVr = [16, 20]
    EX = WR + WSL
    HX = XS
    a(f"s_mov_b32 s36, {f32(CSCALE)}")
    a(f"s_mov_b32 s37, {f32(CSCALE)}")
    vpad_reg(a, 5)
    a("v_lshlrev_b32 v4, 4, v1")
    a("s_mul_i32 s55, s62, 6144")
    a(f"s_add_u32 s55, s55, {EX}")
    a("v_add_u32 v6, s55, v4")
    a("s_cmp_ge_u32 s62, 2")
    a("s_cselect_b32 s56, 0x3f80, 0")
    a("v_and_b32 v2, 31, v1")
    a("v_lshlrev_b32 v2, 6, v2")
    a("v_lshrrev_b32 v3, 5, v1")
    a("v_lshl_add_u32 v7, v3, 3, v2")
    a(f"v_add_u32 v7, {HX}, v7")
    a("s_lshl_b32 s55, s62, 11")
    a("v_add_u32 v2, s55, v7")
    for t in range(7):
        src = 16 + 16 * t
        if t in (0, 3):
            for i in range(8):
                a(f"v_pk_mul_f32 {vr(src + 2 * i, 2)}, {vr(src + 2 * i, 2)}, s[36:37]")
        for i in range(8):
            a(f"v_cvt_pk_bf16_f32 v{16 + 8 * t + i}, v{src + 2 * i}, v{src + 2 * i + 1}")
    exec_set(a, 0, -1)
    for hh in range(2):
        for b in (KP[hh], QP[hh]):
            a(f"v_mov_b32 v{b + 6}, 0")
            a(f"v_mov_b32 v{b + 7}, 0")
    a(f"v_mov_b32 v{HP + 6}, s56")
    a(f"v_mov_b32 v{HP + 7}, 0")
    exec_set(a, "0xf0000000", "0xf0000000")
    for hh in range(2):
        for i in range(8):
            a(f"v_mov_b32 v{VP[hh] + i}, v5")
    exec_full(a)
    for hh in range(2):
        a.ds(f"ds_write_b128 v6, {vr(KP[hh], 4)} offset:{3072 * hh}")
        a.ds(f"ds_write_b128 v6, {vr(KP[hh] + 4, 4)} offset:{3072 * hh + 1024}")
        a.ds(f"ds_write_b128 v6, {vr(VP[hh] + 4, 4)} offset:{3072 * hh + 2048}")
    for g in range(4):
        a.ds(f"ds_write_b64 v2, {vr(HP + 2 * g, 2)} offset:{16 * g}")
    for r in range(24):
        a(f"v_accvgpr_read_b32 v{BO + r}, a{BA + r}")
    a(f"{MFMA} {vr(SO, 16)}, {vr(KP[0], 4)}, {vr(QP[0], 4)}, {vr(BO, 16)}")
    a(f"{MFMA} {vr(SO, 16)}, {vr(KP[0] + 4, 4)}, {vr(QP[0] + 4, 4)}, {vr(SO, 16)}")
    a.ds_drain()
    a("s_barrier")
    a("s_cmp_eq_u32 s62, 0")
    a("s_cbranch_scc1 P1B_W0")
    a("v_subrev_u32 v9, 6144, v6")
    for hh in range(2):
        a(f"ds_read_b128 {vr(PK[hh], 4, 'a')}, v9 offset:{3072 * hh}")
        a(f"ds_read_b128 {vr(PK[hh] + 4, 4, 'a')}, v9 offset:{3072 * hh + 1024}")
        a(f"ds_read_b128 {vr(PVr[hh], 4, 'a')}, v9 offset:{3072 * hh + 2048}")
    a("s_branch P1B_J")
    a("P1B_W0:")
    a("v_bfe_u32 v2, v1, 2, 2")
    a("v_lshrrev_b32 v3, 5, v1")
    a("v_lshl_add_u32 v2, v3, 2, v2")
    a("v_lshlrev_b32 v2, 6, v2")
    a("v_bfe_u32 v3, v1, 4, 1")
    a("v_lshl_add_u32 v2, v3, 5, v2")
    a("v_and_b32 v3, 3, v1")
    a("v_lshl_add_u32 v2, v3, 3, v2")
    a("v_add_u32 v3, 2048, v7")
    for hh in range(2):
        b = 7 if hh == 0 else 3
        a(f"ds_read2_b64 {vr(PK[hh], 4, 'a')}, v{b} offset0:0 offset1:2")
        a(f"ds_read2_b64 {vr(PK[hh] + 4, 4, 'a')}, v{b} offset0:4 offset1:6")
        a(f"ds_read_b64_tr_b16 {vr(PVr[hh], 2, 'a')}, v2 offset:{HX + (2 + hh) * 2048 + 1024}")
        a(f"ds_read_b64_tr_b16 {vr(PVr[hh] + 2, 2, 'a')}, v2 offset:{HX + (2 + hh) * 2048 + 1536}")
    a("P1B_J:")
    a("s_add_u32 s38, s26, 64")
    a("s_lshl_b32 s38, s38, 4")
    a("s_lshl_b32 s39, s22, 1")
    a("s_add_u32 s39, s38, s39")
    a("s_lshl_b32 s38, s39, 11")
    a(f"s_add_u32 s38, s38, {WS_OF}")
    max16(a, 8, SO)
    a("s_waitcnt lgkmcnt(0)")
    a("s_barrier")
    for hh in range(2):
        a(f"{MFMA} {vr(SP, 16)}, {vr(PK[hh], 4, 'a')}, {vr(QP[hh], 4)}, {vr(BP, 16)}")
        a(f"{MFMA} {vr(SP, 16)}, {vr(PK[hh] + 4, 4, 'a')}, {vr(QP[hh] + 4, 4)}, {vr(SP, 16)}")
        if hh == 1:
            max16(a, 8, SO)
        max16(a, 8, SP + 8, n=8, init=True)
        xhalf_max(a, 8, 9)
        regs = [SO + r for r in range(16)] + [SP + 8 + r for r in range(8)]
        for r in regs[::2]:
            a(f"v_pk_add_f32 {vr(r, 2)}, {vr(r, 2)}, v[8:9] op_sel_hi:[1,0] neg_lo:[0,1] neg_hi:[0,1]")
        for r in regs:
            a(f"v_exp_f32 v{r}, v{r}")
        for i in range(12):
            a(f"v_cvt_pk_bf16_f32 v{PP + i}, v{regs[2 * i]}, v{regs[2 * i + 1]}")
        if hh == 0:
            a(f"{MFMA} {vr(SO, 16)}, {vr(KP[1], 4)}, {vr(QP[1], 4)}, {vr(BO, 16)}")
            a(f"{MFMA} {vr(SO, 16)}, {vr(KP[1] + 4, 4)}, {vr(QP[1] + 4, 4)}, {vr(SO, 16)}")
        ob = vr(QP[hh], 16)
        a(f"{MFMA} {ob}, {vr(VP[hh], 4)}, {vr(PP, 4)}, 0")
        a(f"{MFMA} {ob}, {vr(VP[hh] + 4, 4)}, {vr(PP + 4, 4)}, {ob}")
        a(f"{MFMA} {ob}, {vr(PVr[hh], 4, 'a')}, {vr(PP + 8, 4)}, {ob}")
    finalize_full(a, QP[0], SO, 38, 4, 8, 10)
    finalize_full(a, QP[1], SO + 8, 38, 4, 8, 10, off=2048)
    stamp(a, 5)
    a("s_lshl_b32 s59, s39, 4")
    a(f"s_add_u32 s59, s59, {FL_O}")
    a(f"v_mov_b32 v128, v{TG[0]}") if False else None


def helper(a):
    p1_loader(a)
    stamp(a, 6)
    TG[0] = 128
    a("s_lshl_b32 s34, s22, 9")
    a(f"s_add_u32 s34, s34, {FL_KV}")
    flag_poll_issue(a, 34, 64)
    p3_params(a)
    flag_poll_finish(a, 34)
    stamp(a, 7)
    a("s_cmp_eq_u32 s20, 0")
    a("s_cbranch_scc1 H_W1")
    a("s_lshl_b32 s34, s22, 6")
    a("s_lshl_b32 s35, s21, 2")
    a("s_add_u32 s34, s34, s35")
    a("s_lshl_b32 s34, s34, 3")
    a(f"s_add_u32 s34, s34, {FL_Q}")
    flag_wait(a, 34, 4)
    a("H_W1:")
    stamp(a, 8)
    a("s_barrier")
    a("s_cmp_ge_u32 s2, 224")
    a("s_cbranch_scc1 H_NOP3")
    a.vmq = []
    p3_wo_dma(a, 1, 4)
    p3_wo_dma(a, 0, 4)
    a("v_lshlrev_b32 v4, 4, v1")
    p3_setup(a)
    p3_o_index(a, 1)
    a("s_lshl_b32 s34, s50, 1")
    a("s_add_u32 s34, s34, 64")
    a("s_lshl_b32 s34, s34, 8")
    a(f"s_add_u32 s34, s34, {FL_O}")
    flag_wait(a, 34, 64, sleep=8)
    stamp(a, 10)
    a("v_mov_b32 v5, 0x7f000000")
    a("s_barrier")
    p3_load_o(a, 1)
    a("buffer_load_dword v6, v5, s[8:11], 0 offen")
    a("buffer_load_dword v7, v5, s[8:11], 0 offen")
    a("s_barrier")
    a("s_branch P3B")
    a("H_NOP3:")
    a("s_barrier")
    a("s_barrier")
    a("s_branch KF_FIN")


def p1(a):
    p1_decode(a)
    a("s_cmp_ge_u32 s23, 4")
    a("s_cbranch_scc1 HELPER")
    p1_prefetch_setup(a)
    for c, w in PF_PLAN[-1]:
        p1_prefetch(a, c, w, 20, 21)
    a("s_cmp_lg_u32 s20, 0")
    a("s_cbranch_scc1 P1B")
    p1a(a)
    a("s_branch P1_DONE")
    a("HELPER:")
    a.vmq = []; a.dsq = []
    helper(a)
    a("P1B:")
    a.vmq = ["pf", "pf"]; a.dsq = []
    p1b(a)
    XFER = TG[0]
    a(f"v_mov_b32 v128, v{XFER}") if False else None
    a("P1_DONE:")
    a.vmq = []; a.dsq = []


QA, S2, P2R, O2 = 64, 16, 48, 64


def p2(a):
    Q, S0, P0, O = QA, S2, P2R, O2
    a("s_lshl_b32 s24, s22, 1")
    a("s_add_u32 s24, s24, s20")
    a("v_lshlrev_b32 v4, 4, v1")
    a("s_lshl_b32 s25, s21, 2")
    a("s_lshl_b32 s31, s24, 6")
    a("s_lshl_b32 s32, s62, 4")
    a("s_add_u32 s32, s32, s31")
    a("s_lshl_b32 s32, s32, 12")
    a(f"s_add_u32 s32, s32, {WS_KV}")
    a("s_add_u32 s12, s4, s32")
    a("s_addc_u32 s13, s5, 0")
    a("s_and_b32 s13, s13, 0xffff")
    a("s_mov_b32 s14, 65536")
    a("s_mov_b32 s15, 0x20000")
    a("v_mov_b32 v5, v4")
    for i in range(4):
        a(f"s_movk_i32 s{44 + i}, {4096 * i}")
    for j in range(4):
        a(f"s_add_u32 s33, s62, {j}")
        a(f"s_and_b32 s{40 + j}, s33, 3")
    for i in range(8):
        a(f"v_accvgpr_write_b32 a{56 + i}, 0")
    for i in range(64):
        a(f"v_mov_b32 v{O + i}, 0")
    a("s_add_u32 s38, s25, s62")
    a("s_lshl_b32 s38, s38, 4")
    a("s_add_u32 s39, s38, s24")
    a("s_lshl_b32 s38, s39, 11")
    a(f"s_add_u32 s38, s38, {WS_OF}")
    a("s_lshl_b32 s39, s39, 4")
    a(f"s_add_u32 s39, s39, {FL_O}")

    def ldK(i):
        return [f"buffer_load_dwordx4 {vr(16 * i, 4, 'a')}, v5, s[12:15], s{44 + i} offen{LDKV}",
                f"buffer_load_dwordx4 {vr(16 * i + 4, 4, 'a')}, v5, s[12:15], s{44 + i} offen offset:1024{LDKV}"]

    def ldV(i):
        return [f"buffer_load_dwordx4 {vr(16 * i + 8, 4, 'a')}, v5, s[12:15], s{44 + i} offen offset:2048{LDKV}",
                f"buffer_load_dwordx4 {vr(16 * i + 12, 4, 'a')}, v5, s[12:15], s{44 + i} offen offset:3072{LDKV}"]

    a("s_cmp_eq_u32 s20, 0")
    a("s_cbranch_scc1 P2_W1A")
    TG[0] = 140
    tag_get(a)
    flag_store(a, 59, 4)
    stamp(a, 7)
    a("s_barrier")
    stamp(a, 8)
    for j in range(4):
        a(f"s_add_u32 s33, s{40 + j}, s25")
        a("s_add_u32 s33, s33, s31")
        a("s_lshl_b32 s33, s33, 11")
        a(f"buffer_load_dwordx4 {vr(Q + 8 * j, 4, 'a')}, v4, s[8:11], s33 offen{LD}")
        a(f"buffer_load_dwordx4 {vr(Q + 8 * j + 4, 4, 'a')}, v4, s[8:11], s33 offen offset:1024{LD}")
        if j == 0:
            for x in ldK(0): a(x)
    for x in ldV(0) + ldK(1) + ldV(1) + ldK(2) + ldV(2) + ldK(3): a(x)
    a("s_waitcnt vmcnt(12)")
    a("s_branch P2_GO")
    a("P2_W1A:")
    stamp(a, 7)
    a("s_barrier")
    stamp(a, 8)
    a("P2_QA:")
    for i in range(3):
        for x in ldK(i) + ldV(i): a(x)
    for x in ldK(3): a(x)
    for j in range(4):
        a(f"s_lshl_b32 s33, s{40 + j}, 11")
        a(f"s_add_u32 s33, s33, {QX}")
        a("v_add_u32 v6, s33, v4")
        a(f"ds_read_b128 {vr(Q + 8 * j, 4, 'a')}, v6")
        a(f"ds_read_b128 {vr(Q + 8 * j + 4, 4, 'a')}, v6 offset:1024")
    a("s_waitcnt vmcnt(12) lgkmcnt(0)")
    a("P2_GO:")
    TG[0] = 128
    for i in range(8):
        a(f"v_mov_b32 v{P0 + 8 + i}, 0")
    a("s_setprio 2")
    stamp(a, 9)
    a(f"{MFMA} {vr(S0, 16)}, {vr(0, 4, 'a')}, {vr(Q, 4, 'a')}, 0")
    a(f"{MFMA} {vr(S0, 16)}, {vr(4, 4, 'a')}, {vr(Q + 4, 4, 'a')}, {vr(S0, 16)}")
    a("s_mov_b32 s35, 4")
    a("s_mov_b32 s36, 0")
    a("s_nop 7")
    a(".p2align 6")
    a("P2_LOOP:")
    lstart = a.mark()
    for i in range(4):
        for j in range(4):
            n = 4 * i + j
            Sc, Sn = S0 + 16 * (n % 2), S0 + 16 * ((n + 1) % 2)
            Pc, Pp = P0 + 8 * (n % 2), P0 + 8 * ((n + 1) % 2)
            i1, j1 = (i, j + 1) if j < 3 else ((i + 1) % 4, 0)
            i0, j0 = (i, j - 1) if j > 0 else ((i - 1) % 4, 3)
            ex = [f"v_exp_f32 v{Sc + r}, v{Sc + r}" for r in range(16)]
            cv = [f"v_cvt_pk_bf16_f32 v{Pc + r}, v{Sc + 2 * r}, v{Sc + 2 * r + 1}" for r in range(8)]
            Oj = vr(O + 16 * j0, 16)
            qk0 = f"{MFMA} {vr(Sn, 16)}, {vr(16 * i1, 4, 'a')}, {vr(Q + 8 * j1, 4, 'a')}, 0"
            qk1 = f"{MFMA} {vr(Sn, 16)}, {vr(16 * i1 + 4, 4, 'a')}, {vr(Q + 8 * j1 + 4, 4, 'a')}, {vr(Sn, 16)}"
            pv0 = f"{MFMA} {Oj}, {vr(16 * i0 + 8, 4, 'a')}, {vr(Pp, 4)}, {Oj}"
            pv1 = f"{MFMA} {Oj}, {vr(16 * i0 + 12, 4, 'a')}, {vr(Pp + 4, 4)}, {Oj}"
            base = [qk0] + ex[0:4] + [qk1] + ex[4:8] + cv[0:2] + [pv0] + ex[8:12] + cv[2:4] + [pv1] + ex[12:16] + cv[4:8]
            extra = {}

            def put(pos, ins):
                extra.setdefault(pos, []).append(ins)
            sl = 44 + i
            if j == 0:
                v = ldV((i - 1) % 4)
                put(19, v[0]); put(23, v[1])
            if j == 1:
                put(9, "s_waitcnt vmcnt(12)")
                put(1, f"s_add_u32 s{sl}, s{sl}, 16384")
                if i == 0:
                    put(3, "s_cmp_eq_u32 s35, 1")
                    put(6, "s_cselect_b32 s36, 0x100000, 0")
                    put(7, "v_add_u32 v5, s36, v4")
                if i == 3:
                    put(3, "s_sub_u32 s35, s35, 1")
            if j == 2:
                k = ldK(i)
                put(5, k[0]); put(12, k[1])
                put(23, "s_waitcnt vmcnt(12)")
            if j == 3 and i == 3:
                put(22, "s_cmp_lg_u32 s35, 0")
            for p, ins in enumerate(base):
                a(ins)
                for e in extra.get(p, []):
                    a(e)
    a("s_cbranch_scc1 P2_LOOP")
    a.check_backedge(lstart, "p2")
    stamp(a, 10)
    Oj = vr(O + 48, 16)
    a(f"{MFMA} {Oj}, {vr(56, 4, 'a')}, {vr(P0 + 8, 4)}, {Oj}")
    a(f"{MFMA} {Oj}, {vr(60, 4, 'a')}, {vr(P0 + 12, 4)}, {Oj}")
    CB = P2_CB
    for j in range(1, 4):
        a(f"s_mul_i32 s33, s{40 + j}, 12288")
        a(f"s_add_u32 s33, s33, {CB + (j - 1) * 4096}")
        a(f"v_add_u32 v{5 + j}, s33, v4")
    a("s_mul_i32 s33, s62, 12288")
    a(f"s_add_u32 s33, s33, {CB}")
    a("v_add_u32 v5, s33, v4")
    for j in range(1, 4):
        for k in range(4):
            a(f"ds_write_b128 v{5 + j}, {vr(O + 16 * j + 4 * k, 4)} offset:{1024 * k}")
    p3_params(a)
    p3_o_index(a, 1)
    a("s_waitcnt lgkmcnt(0)")
    a("s_barrier")
    T = S0
    for k in range(12):
        a(f"ds_read_b128 {vr(T + 4 * k, 4)}, v5 offset:{1024 * k}")
    a.vmq = []
    p3_load_o(a, 1)
    for sl in range(3):
        for k in range(4):
            a(f"s_waitcnt lgkmcnt({11 - (4 * sl + k)})")
            if FUSED and sl == 2 and k == 3:
                a("s_barrier")
            for u in range(2):
                r = 4 * k + 2 * u
                a(f"v_pk_add_f32 {vr(O + r, 2)}, {vr(O + r, 2)}, {vr(T + 16 * sl + r, 2)}")
    a("v_mov_b32 v8, 0")
    a("v_mov_b32 v9, 0")
    a("v_mov_b32 v10, 0")
    a("v_mov_b32 v11, 0")
    for i in range(8):
        a(f"v_pk_fma_f32 v[8:9], {vr(O + 2 * i, 2)}, v[10:11], v[8:9]")
    a(f"v_mov_b32 v10, {f32(2.0 ** 120)}")
    a("v_cmp_u_f32 vcc, v8, v9")
    a(f"v_cmp_nlt_f32 s[44:45], v{O + 12}, v10")
    a("s_or_b32 s44, s45, vcc_lo")
    a("s_or_b32 s44, s44, vcc_hi")
    a("s_cmp_lg_u32 s44, 0")
    a("s_cbranch_scc1 P2_SLOW")
    a("P2_FIN:")
    finalize_full(a, O, S0, 38, 4, 8, 10)
    stamp(a, 11)


def p2_slow(a):
    S0, P0, O = S2, P2R, O2
    TG[0] = 128
    KT, Q = 96, 112
    a("P2_SLOW:")
    a("s_nop 7")
    a("s_lshl_b32 s32, s31, 12")
    a(f"s_add_u32 s32, s32, {WS_KV}")
    a("s_add_u32 s12, s4, s32")
    a("s_addc_u32 s13, s5, 0")
    a("s_and_b32 s13, s13, 0xffff")
    a("s_mov_b32 s14, 262144")
    a("s_mov_b32 s15, 0x20000")
    a("s_mov_b32 s46, 0x07060302")
    if FUSED:
        pass
    for i in range(8):
        a(f"v_accvgpr_read_b32 v{Q + i}, a{QA + i}")
    exec_set(a, 0, -1)
    a(f"v_mov_b32 v{Q + 6}, 0")
    a(f"v_mov_b32 v{Q + 7}, 0")
    exec_full(a)
    a("v_mov_b32 v8, 0xff800000")
    a("v_mov_b32 v5, v4")
    a("s_mov_b32 s35, 64")
    a("P2_SLOW1:")
    a(f"buffer_load_dwordx4 {vr(KT, 4)}, v5, s[12:15], 0 offen{LD}")
    a(f"buffer_load_dwordx4 {vr(KT + 4, 4)}, v5, s[12:15], 0 offen offset:1024{LD}")
    a("s_waitcnt vmcnt(0)")
    a(f"{MFMA} {vr(S0, 16)}, {vr(KT, 4)}, {vr(Q, 4)}, 0")
    a(f"{MFMA} {vr(S0, 16)}, {vr(KT + 4, 4)}, {vr(Q + 4, 4)}, {vr(S0, 16)}")
    a("v_add_u32 v5, 4096, v5")
    max16(a, 8, S0, init=True)
    a("s_nop 7")
    a("s_sub_u32 s35, s35, 1")
    a("s_cmp_lg_u32 s35, 0")
    a("s_cbranch_scc1 P2_SLOW1")
    xhalf_max(a, 8, 9)
    a("v_sub_f32 v8, 0, v8")
    split_negm(a, 8, 9, 10, Q + 6, Q + 7, 46)
    for i in range(16):
        a(f"v_mov_b32 v{O + i}, 0")
    a("v_mov_b32 v5, v4")
    a("s_mov_b32 s35, 64")
    a("P2_SLOW2:")
    for k in range(4):
        a(f"buffer_load_dwordx4 {vr(KT + 4 * k, 4)}, v5, s[12:15], 0 offen offset:{1024 * k}{LD}")
    a("s_waitcnt vmcnt(0)")
    a(f"{MFMA} {vr(S0, 16)}, {vr(KT, 4)}, {vr(Q, 4)}, 0")
    a(f"{MFMA} {vr(S0, 16)}, {vr(KT + 4, 4)}, {vr(Q + 4, 4)}, {vr(S0, 16)}")
    a("v_add_u32 v5, 4096, v5")
    for r in range(16):
        a(f"v_exp_f32 v{S0 + r}, v{S0 + r}")
    for r in range(8):
        a(f"v_cvt_pk_bf16_f32 v{P0 + r}, v{S0 + 2 * r}, v{S0 + 2 * r + 1}")
    a(f"{MFMA} {vr(O, 16)}, {vr(KT + 8, 4)}, {vr(P0, 4)}, {vr(O, 16)}")
    a(f"{MFMA} {vr(O, 16)}, {vr(KT + 12, 4)}, {vr(P0 + 4, 4)}, {vr(O, 16)}")
    a("s_nop 15")
    a("s_sub_u32 s35, s35, 1")
    a("s_cmp_lg_u32 s35, 0")
    a("s_cbranch_scc1 P2_SLOW2")
    a("s_nop 7")
    a("s_branch P2_FIN")


OREG = 0


def p3_params(a):
    a("s_and_b32 s3, s2, 7")
    a("s_lshr_b32 s49, s2, 3")
    a("s_mul_i32 s50, s49, 37")
    a("s_lshr_b32 s50, s50, 8")
    a("s_mul_i32 s51, s50, 7")
    a("s_sub_u32 s51, s49, s51")
    a("s_lshl_b32 s51, s51, 7")
    a("s_lshl_b32 s3, s3, 2")
    a("s_add_u32 s50, s50, s3")
    a("s_and_b32 s50, s50, 31")
    a("s_and_b32 s52, s23, 1")
    a("s_lshl_b32 s3, s50, 1")
    a("s_add_u32 s52, s52, s3")
    a("s_lshr_b32 s53, s23, 1")


def p3_wo_dma(a, br, nw):
    wv = "s62" if nw == 4 else "s23"
    a("v_lshrrev_b32 v6, 3, v1")
    a("v_mul_u32_u24 v3, 896, v6")
    a("v_bfe_u32 v7, v1, 4, 1")
    a("v_lshlrev_b32 v7, 2, v7")
    a("v_and_b32 v6, 7, v1")
    a("v_xor_b32 v7, v7, v6")
    a("v_lshl_add_u32 v3, v7, 4, v3")
    a("v_add_u32 v3, s51, v3")
    a(f"s_mul_i32 s54, {wv}, 7168")
    a(f"s_lshl_b32 s55, {wv}, 10")
    a(f"s_add_u32 s55, s55, {P3_WO[br]}")
    srd(a, 16, 84 + 6 * br, 85 + 6 * br, 448 * 896)
    for m in range(56 // nw):
        a(f"s_add_u32 m0, s55, {1024 * nw * m}")
        if m:
            a(f"s_add_u32 s54, s54, {nw * 7168}")
        a.vm("buffer_load_dwordx4 v3, s[16:19], s54 offen lds", f"wo{br}")
        if m % WO_BATCH == WO_BATCH - 1:
            a("s_waitcnt vmcnt(0)")


def p3_o_index(a, br):
    a(f"s_add_u32 s29, s52, {64 * br}")
    a("s_lshl_b32 s29, s29, 4")
    a("s_lshl_b32 s28, s53, 2")
    a("s_add_u32 s29, s29, s28")
    a("s_lshl_b32 s28, s29, 4")
    a(f"s_add_u32 s28, s28, {FL_O}")
    a("s_lshl_b32 s29, s29, 11")
    a(f"s_add_u32 s29, s29, {WS_OF}")
    a("s_add_u32 s30, s29, 4096")


def p3_load_o(a, br):
    for ks in range(8):
        a.vm(f"buffer_load_dwordx4 {vr(OREG + 4 * ks, 4, 'a')}, v4, s[8:11], s{29 + ks // 4} offen offset:{(ks % 4) * 1024}{LD}", f"o{ks}")


def p3_setup(a):
    a("v_bfe_u32 v6, v1, 2, 2")
    a("v_lshrrev_b32 v7, 5, v1")
    a("v_lshl_add_u32 v8, v7, 2, v6")
    a("v_lshlrev_b32 v5, 7, v8")
    a("s_and_b32 s54, s53, 1")
    a("s_lshr_b32 s55, s53, 1")
    a("v_bfe_u32 v8, v1, 4, 1")
    a("v_xor_b32 v8, s54, v8")
    a("v_lshl_add_u32 v5, v8, 5, v5")
    a("v_and_b32 v8, 1, v1")
    a("v_lshl_add_u32 v5, v8, 4, v5")
    a("v_bfe_u32 v8, v1, 1, 1")
    a("v_lshl_add_u32 v5, v8, 3, v5")
    a("s_mul_i32 s56, s53, 14336")
    a("v_add_u32 v5, s56, v5")
    a("v_lshrrev_b32 v6, 1, v6")
    a("v_xor_b32 v6, s55, v6")
    a("v_lshl_add_u32 v112, v6, 6, v5")
    a("v_xor_b32 v6, 1, v6")
    a("v_lshl_add_u32 v113, v6, 6, v5")
    a("v_lshlrev_b32 v7, 9, v7")
    a("v_sub_u32 v114, v112, v7")
    a("v_sub_u32 v115, v113, v7")
    a("s_and_b32 s56, s23, 1")
    a("s_mul_i32 s56, s56, 24576")
    a(f"s_add_u32 s56, s56, {P3_EXCH}")
    for b in range(1, 4):
        a(f"s_xor_b32 s57, s53, {b}")
        a("s_mul_i32 s57, s57, 6144")
        a("s_add_u32 s57, s57, s56")
        a(f"s_add_u32 s57, s57, {(b - 1) * 2048}")
        a(f"v_add_u32 v{115 + b}, s57, v4")
    a("s_mul_i32 s57, s53, 6144")
    a("s_add_u32 s57, s57, s56")
    a("v_add_u32 v119, s57, v4")
    a("v_and_b32 v8, 31, v1")
    a("v_mul_u32_u24 v8, 1792, v8")
    a("v_lshrrev_b32 v9, 5, v1")
    a("v_lshl_add_u32 v120, v9, 4, v8")
    a("s_mul_i32 s58, s52, 57344")
    a("s_add_u32 s58, s58, s51")
    a("s_lshl_b32 s57, s53, 5")
    a("s_add_u32 s58, s58, s57")
    a("s_add_u32 s59, s58, 896")
    srd(a, 12, 92, 93, 2048 * 1792)


def p3_compute(a, br, mid=None):
    ACC, WF = 16, 48
    base = 0
    if br == 0:
        for r in range(112, 116):
            a(f"v_add_u32 v{r}, {P3_WO[0]}, v{r}")

    def trread(ks, ct):
        hd, f = divmod(ks, 2)
        off = base + (28 * hd + 16 * f) * 128
        d = WF + 8 * (ks % 4) + 4 * ct
        a.ds(f"ds_read_b64_tr_b16 {vr(d, 2)}, v{112 + ct} offset:{off}", f"w{ks}_{ct}")
        a.ds(f"ds_read_b64_tr_b16 {vr(d + 2, 2)}, v{112 + ct + 2 * f} offset:{off + 1024}", f"w{ks}_{ct}")

    for ks in range(3):
        trread(ks, 0); trread(ks, 1)
    for ks in range(8):
        a.vm_wait(f"o{ks}")
        for ct in range(2):
            a.ds_wait(f"w{ks}_{ct}")
            acc = vr(ACC + 16 * ct, 16)
            c = "0" if ks == 0 else acc
            a(f"{MFMA} {acc}, {vr(WF + 8 * (ks % 4) + 4 * ct, 4)}, {vr(OREG + 4 * ks, 4, 'a')}, {c}")
            if ks + 3 < 8:
                trread(ks + 3, ct)
    if mid:
        mid(a)
    for b in range(1, 4):
        r = ACC + 8 * b
        a(f"ds_write_b128 v{115 + b}, {vr(r, 4)}")
        a(f"ds_write_b128 v{115 + b}, {vr(r + 4, 4)} offset:1024")
    a("s_waitcnt lgkmcnt(0)")
    a("s_barrier")
    for k in range(6):
        a(f"ds_read_b128 {vr(80 + 4 * k, 4)}, v119 offset:{1024 * k}")
    for s in range(3):
        a(f"s_waitcnt lgkmcnt({4 - 2 * s})")
        for u in range(4):
            a(f"v_pk_add_f32 {vr(ACC + 2 * u, 2)}, {vr(ACC + 2 * u, 2)}, {vr(80 + 8 * s + 2 * u, 2)}")
    a.dsq = []
    for i in range(4):
        a(f"v_cvt_pk_bf16_f32 v{104 + i}, v{ACC + 2 * i}, v{ACC + 2 * i + 1}")
    a.vm(f"buffer_store_dwordx4 v[104:107], v120, s[12:15], s{58 + br} offen{OUTB_ST if br else OUT_ST}", "out")


def kd(name, nv, acc):
    return f""".p2align 6
.amdhsa_kernel {name}
  .amdhsa_next_free_vgpr {nv}
  .amdhsa_next_free_sgpr 102
  .amdhsa_accum_offset {acc}
  .amdhsa_group_segment_fixed_size 0
  .amdhsa_kernarg_size 72
  .amdhsa_user_sgpr_count 2
  .amdhsa_user_sgpr_kernarg_segment_ptr 1
  .amdhsa_system_sgpr_workgroup_id_x 1
.end_amdhsa_kernel
"""


def finish(a, kidx, end):
    if STAMPS:
        a("s_waitcnt vmcnt(0)")
        stamp(a, 14)
    stamp_dump(a, kidx)
    a(f"{end}:")
    a("s_endpgm")


def kf(a):
    a(f"{NAME}_kernel:")
    stamp(a, 0) if False else None
    common_prologue(a, 256, "KERNEL_END")
    stamp(a, 0)
    p1(a)
    p2(a)
    a("s_setprio 0")
    a("s_cmp_lt_u32 s2, 224")
    a("s_cbranch_scc1 P3_GO")
    a("s_waitcnt vmcnt(0)")
    flag_store(a, 39, 2)
    a("s_branch KF_FIN")
    a("P3_GO:")
    p3_setup(a)
    a("P3B:")
    TG[0] = 128
    a.vmq = [f"o{k}" for k in range(8)] + ["st", "st"]
    a.dsq = []

    def mid(a):
        a("s_cmp_ge_u32 s23, 4")
        a("s_cbranch_scc1 P3_NOFLAG")
        a("s_waitcnt vmcnt(0)")
        flag_store(a, 39, 2)
        a("P3_NOFLAG:")
    p3_compute(a, 1, mid)
    stamp(a, 12)
    p3_o_index(a, 0)
    flag_wait(a, 28, 8)
    stamp(a, 13)
    p3_load_o(a, 0)
    a("s_barrier")
    p3_compute(a, 0)
    a("KF_FIN:")
    finish(a, 0, "KERNEL_END")
    p2_slow(a)


def main(out):
    hdr = open(f"cdna_kernels/{NAME}.s.ref").read().split("; Override")[0]
    txt = hdr
    txt += "; @launch grid=(256,1,1) block=(512,1,1) lds=163840\n"
    ks = ((f"{NAME}_kernel", kf),)
    txt += '.amdgcn_target "amdgcn-amd-amdhsa--gfx950"\n.text\n'
    for nm, fn in ks:
        a = Asm()
        fn(a)
        txt += f".globl {nm}\n.p2align 8\n.type {nm},@function\n" + a.text()
        print(nm, "instrs:", len(a.items), "auto nops:", a.nops_inserted, file=sys.stderr)
        if "-v" in sys.argv:
            for l in a.log:
                print("   ", l, file=sys.stderr)
    txt += '.section .rodata,"a"\n'
    for nm, fn in ks:
        txt += kd(nm, 256, NV_ARCH)
    open(out, "w").write(txt)


if __name__ == "__main__":
    if "--stamps" in sys.argv:
        STAMPS = True
    for x in sys.argv[1:]:
        if x.startswith("--set="):
            k, v = x[6:].split("=", 1)
            globals()[k] = eval(v)
    args = [x for x in sys.argv[1:] if not x.startswith("-")]
    main(args[0] if args else f"cdna_kernels/{NAME}.s")
```
